```python
import torch

def _softmax(x, axis=-1):
    return torch.softmax(x, dim=axis)
def _gelu(x):
    return torch.nn.functional.gelu(x, approximate="tanh")
def _silu(x):
    return torch.nn.functional.silu(x)
def _sigmoid(x):
    return torch.sigmoid(x)
def _layernorm(x, axis=-1, eps=1e-5):
    m = x.mean(dim=axis, keepdim=True)
    v = x.var(dim=axis, keepdim=True, unbiased=False)
    return (x - m) / torch.sqrt(v + eps)
def _scatter_add(tgt, idx, src, axis=0):
    return tgt.clone().index_add_(axis, idx, src)
def _segment_sum(src, seg, n):
    out = torch.zeros((n,) + src.shape[1:], dtype=src.dtype)
    return out.index_add_(0, seg, src)
def _pad(x, pw):
    flat = tuple(v for pair in reversed(pw) for v in pair)
    return torch.nn.functional.pad(x, flat)

kernel_name = 'recurrent_scan__ssm_conv_s5__glu_gated_reglu__prompt'

def setup_inputs():

    _w = (lambda a: (lambda t: t.to(torch.bfloat16) if t.is_floating_point() else t)(torch.as_tensor(a)))
    def _A_setup():
        B, S, D = 1, 2048, 512
        P = D
        Lambda_re = -0.5 * (lambda _x: torch.exp(torch.as_tensor(_x)))((lambda *s: torch.randn(*s, dtype=torch.bfloat16) * 0.8)(P))
        Lambda_im = (lambda *s: torch.randn(*s, dtype=torch.bfloat16) * 0.8)(P) * 1.0
        B_re = (lambda *s: torch.randn(*s, dtype=torch.bfloat16) * 0.8)(P, D) * (D ** -0.5)
        B_im = (lambda *s: torch.randn(*s, dtype=torch.bfloat16) * 0.8)(P, D) * (D ** -0.5)
        C_re = (lambda *s: torch.randn(*s, dtype=torch.bfloat16) * 0.8)(D, P) * (P ** -0.5)
        C_im = (lambda *s: torch.randn(*s, dtype=torch.bfloat16) * 0.8)(D, P) * (P ** -0.5)
        log_dt = (lambda *s: torch.randn(*s, dtype=torch.bfloat16) * 0.8)(P) * 0.3 - 2.0
        Dskip = (lambda *s: torch.randn(*s, dtype=torch.bfloat16) * 0.8)(D)
        return {
            "x": _w((lambda *s: torch.randn(*s, dtype=torch.bfloat16) * 0.05)(B, S, D)),
            "Lambda_re": _w(Lambda_re),
            "Lambda_im": _w(Lambda_im),
            "B_re": _w(B_re),
            "B_im": _w(B_im),
            "C_re": _w(C_re),
            "C_im": _w(C_im),
            "log_dt": _w(log_dt),
            "Dskip": _w(Dskip),
        }
    _A_in = _A_setup()

    def _B_setup():
        B, S, D, F = 1, 2048, 512, 1376
        return {
            "x": _w((lambda *s: torch.randn(*s, dtype=torch.bfloat16) * 0.05)(B, S, D)),
            "W_gate": _w((lambda *s: torch.randn(*s, dtype=torch.bfloat16) * 0.2)(D, F) * (2.0 / D) ** 0.5),
            "W_up": _w((lambda *s: torch.randn(*s, dtype=torch.bfloat16) * 0.2)(D, F) * (2.0 / D) ** 0.5),
            "W_down": _w((lambda *s: torch.randn(*s, dtype=torch.bfloat16) * 0.2)(F, D) * (1.0 / F) ** 0.5),
        }
    _B_in = _B_setup()

    return {
        "A_x": _A_in["x"],
        "A_Lambda_re": _A_in["Lambda_re"],
        "A_Lambda_im": _A_in["Lambda_im"],
        "A_B_re": _A_in["B_re"],
        "A_B_im": _A_in["B_im"],
        "A_C_re": _A_in["C_re"],
        "A_C_im": _A_in["C_im"],
        "A_log_dt": _A_in["log_dt"],
        "A_Dskip": _A_in["Dskip"],
        "B_x": _B_in["x"],
        "B_W_gate": _B_in["W_gate"],
        "B_W_up": _B_in["W_up"],
        "B_W_down": _B_in["W_down"],
    }

def reference(A_x, A_Lambda_re, A_Lambda_im, A_B_re, A_B_im, A_C_re, A_C_im, A_log_dt, A_Dskip, B_x, B_W_gate, B_W_up, B_W_down):
    def _A_ref(x, Lambda_re, Lambda_im, B_re, B_im, C_re, C_im, log_dt, Dskip):
        Bsz, L, H = x.shape
        Lam = Lambda_re + 1j * Lambda_im
        Bmat = B_re + 1j * B_im
        Cmat = C_re + 1j * C_im
        dt = torch.exp(log_dt)
        Lam_bar = torch.exp(dt * Lam)
        B_bar = ((Lam_bar - 1.0) / Lam)[:, None] * Bmat
        Bu = torch.einsum("bld,pd->blp", x + 0j, B_bar)
        h = torch.zeros_like(Bu[:, 0, :])
        hs = []
        for t in range(L):
            h = Lam_bar[None, :] * h + Bu[:, t, :]
            hs.append(h)
        hseq = torch.stack(hs, 1)
        y = 2.0 * torch.einsum("blp,dp->bld", hseq, Cmat).real + x * Dskip[None, None, :]
        return y

    def _B_ref(x, W_gate, W_up, W_down):
        gate = torch.einsum("bsd,df->bsf", x, W_gate)
        up = torch.einsum("bsd,df->bsf", x, W_up)
        gate = gate * (lambda x, dt: x.to(dt))(gate > 0, gate.dtype)
        h = gate * up
        return torch.einsum("bsf,fd->bsd", h, W_down)

    x = A_x
    xn = _layernorm(x, axis=-1)
    s = _A_ref(xn, A_Lambda_re, A_Lambda_im, A_B_re, A_B_im, A_C_re, A_C_im, A_log_dt, A_Dskip)
    g = _silu(_B_ref(xn, B_W_gate, B_W_up, B_W_down))
    return x + s * g
```

```python
import re

_REG_RE = re.compile(r"\b([vas])(\d+)\b|\b([vas])\[(\d+):(\d+)\]|\b(vcc|exec|m0|scc)\b")

TRANS = ("v_exp_f32", "v_log_f32", "v_rcp_f32", "v_rsq_f32", "v_sqrt_f32", "v_sin_f32", "v_cos_f32")


def regs_of(op):
    out = []
    for m in _REG_RE.finditer(op):
        if m.group(1):
            out.append((m.group(1), int(m.group(2))))
        elif m.group(3):
            for i in range(int(m.group(4)), int(m.group(5)) + 1):
                out.append((m.group(3), i))
        else:
            out.append((m.group(6), 0))
    return out


def split_ops(s):
    ops, depth, cur = [], 0, ""
    for ch in s:
        if ch in "[(":
            depth += 1
        if ch in "])":
            depth -= 1
        if ch == "," and depth == 0:
            ops.append(cur.strip())
            cur = ""
        else:
            cur += ch
    if cur.strip():
        ops.append(cur.strip())
    return ops


class Ins:
    __slots__ = ("text", "mn", "kind", "wr", "rd", "srcc", "srcab", "passes", "lds_dma")


def parse(text):
    t = text.split(";")[0].strip()
    sp = t.split(None, 1)
    mn = sp[0]
    rest = sp[1] if len(sp) > 1 else ""
    ops = split_ops(rest)
    I = Ins()
    I.text, I.mn, I.wr, I.rd, I.srcc, I.srcab, I.passes, I.lds_dma = text, mn, [], [], [], [], 0, False
    clean = []
    for o in ops:
        o2 = re.split(r"\s+(?:op_sel|op_sel_hi|neg_lo|neg_hi|offset|offset0|offset1|offen|idxen|sc0|sc1|nt|lds|clamp|mul|div|row_|quad_perm|bank_mask|bound_ctrl|cbsz|abid|blgp|off\b)", o)[0]
        clean.append(o2)
    ops = clean
    R = [regs_of(o) for o in ops]
    if mn.startswith("v_mfma"):
        I.kind = "mfma"
        I.wr = R[0]
        I.srcab = R[1] + R[2]
        I.srcc = R[3]
        I.rd = I.srcab + I.srcc
        I.passes = 8 if "32x32x16" in mn else 4
    elif mn.startswith("v_cmp"):
        I.kind = "valu"
        I.wr = R[0]
        I.rd = sum(R[1:], [])
    elif mn.startswith("v_readfirstlane") or mn.startswith("v_readlane"):
        I.kind = "valu"
        I.wr = R[0]
        I.rd = sum(R[1:], [])
    elif mn.startswith("v_permlane"):
        I.kind = "valu"
        I.wr = R[0] + R[1]
        I.rd = R[0] + R[1]
    elif mn.startswith("v_"):
        I.kind = "valu"
        I.wr = R[0]
        I.rd = sum(R[1:], [])
        if mn.startswith(("v_fmac", "v_dot2c", "v_pk_fmac")):
            I.rd = I.rd + R[0]
        if mn.startswith("v_cndmask") and len(ops) == 3:
            I.rd = I.rd + [("vcc", 0)]
        if "_co_" in mn:
            I.wr = R[0] + R[1]
            I.rd = sum(R[2:], [])
    elif mn.startswith("ds_read") or mn.startswith("ds_bpermute") or mn.startswith("ds_swizzle"):
        I.kind = "ds"
        I.wr = R[0]
        I.rd = sum(R[1:], [])
    elif mn.startswith("ds_write") or mn.startswith("ds_add"):
        I.kind = "ds"
        I.rd = sum(R, [])
    elif mn.startswith(("buffer_load", "global_load")):
        I.kind = "vmem"
        if re.search(r"\blds\b", t) or "_lds_" in mn:
            I.lds_dma = True
            I.rd = sum(R, []) + [("m0", 0)]
        else:
            I.wr = R[0]
            I.rd = sum(R[1:], [])
            if "d16" in mn:
                I.rd = I.rd + R[0]
    elif mn.startswith(("buffer_store", "global_store", "buffer_atomic", "global_atomic")):
        I.kind = "vmem"
        I.rd = sum(R, [])
    elif mn.startswith(("buffer_inv", "buffer_wbl2")):
        I.kind = "vmem"
    elif mn.startswith(("s_load", "s_memtime", "s_memrealtime", "s_buffer_load")):
        I.kind = "smem"
        I.wr = R[0]
        I.rd = sum(R[1:], [])
    elif mn.startswith(("s_cmp", "s_bitcmp")):
        I.kind = "salu"
        I.rd = sum(R, [])
        I.wr = [("scc", 0)]
    elif mn.startswith(("s_waitcnt", "s_barrier", "s_nop", "s_setprio", "s_sleep", "s_endpgm", "s_branch", "s_cbranch")):
        I.kind = "ctl"
    elif mn.startswith("s_"):
        I.kind = "salu"
        I.wr = R[0] if R else []
        I.rd = sum(R[1:], [])
    else:
        raise ValueError("unknown instruction: " + text)
    return I


class Stream:
    def __init__(self):
        self.lines = []
        self.pos = 0
        self.lastw = {}
        self.mfma_c_read = {}
        self.store_rd = {}
        self.vm = []
        self.lg = []
        self.nins = 0

    def raw(self, text, states=1):
        self.lines.append("    " + text)
        self.pos += states
        self.nins += 1

    def label(self, name):
        self.lines.append(name + ":")

    def comment(self, c):
        self.lines.append("    ; " + c)

    def nop(self, n):
        while n > 0:
            k = min(n, 16)
            self.raw("s_nop %d" % (k - 1), states=k)
            n -= k

    def _emit_wait(self, vm=None, lg=None):
        parts = []
        if vm is not None:
            assert vm <= 63
            parts.append("vmcnt(%d)" % vm)
            self.vm = self.vm[len(self.vm) - vm:] if vm else []
        if lg is not None:
            lg = min(lg, 15)
            parts.append("lgkmcnt(%d)" % lg)
            self.lg = self.lg[len(self.lg) - lg:] if lg else []
        if parts:
            self.raw("s_waitcnt " + " ".join(parts))

    def wait_vm_tag(self, tag):
        idx = [i for i, (t, _) in enumerate(self.vm) if t == tag]
        if idx:
            self._emit_wait(vm=len(self.vm) - 1 - idx[-1])

    def wait_vm(self, n=0):
        if len(self.vm) > n:
            self._emit_wait(vm=n)

    def wait_lg(self, n=0):
        if len(self.lg) > n:
            self._emit_wait(lg=n)

    def wait_all(self):
        self._emit_wait(vm=0 if self.vm else None, lg=0 if self.lg else None)

    def force_wait(self, vm=None, lg=None):
        self._emit_wait(vm=vm, lg=lg)

    def __call__(self, text, tag=None):
        for ln in text.strip().split("\n"):
            ln = ln.strip()
            if ln:
                self.emit(ln, tag)

    def emit(self, text, tag=None):
        I = parse(text)
        touched = set(I.rd) | set(I.wr)
        nvm = nlg = None
        for i, (_, d) in enumerate(self.vm):
            if d & touched:
                nvm = len(self.vm) - 1 - i
        for i, (_, d) in enumerate(self.lg):
            if d & touched:
                nlg = len(self.lg) - 1 - i
        if nvm is not None or nlg is not None:
            self._emit_wait(nvm, nlg)
        need = 0

        def req(p, n):
            nonlocal need
            need = max(need, n - (self.pos - p - 1))
        for r in I.rd:
            w = self.lastw.get(r)
            if not w:
                continue
            p, kind, info = w
            if kind == "valu":
                if r[0] in "va":
                    if I.kind == "mfma":
                        req(p, 2)
                    if I.mn.startswith(("v_readfirstlane", "v_readlane")):
                        req(p, 1)
                    if I.mn.startswith("v_permlane") or "dpp" in text or "row_" in text:
                        req(p, 2)
                    if info == "trans" and I.kind == "valu" and not I.mn.startswith(TRANS):
                        req(p, 1)
                    if info == "trans" and I.kind != "valu":
                        req(p, 1)
                    if info and info.startswith("dot"):
                        if I.mn == info[4:] and r in (regs_of_last(I)):
                            pass
                        else:
                            req(p, 3)
                else:
                    if I.kind in ("valu", "mfma"):
                        req(p, 2)
                        if I.mn.startswith(("v_readlane", "v_writelane")):
                            req(p, 4)
                    if I.kind == "vmem":
                        req(p, 5)
                    if I.kind in ("salu", "ctl", "smem"):
                        req(p, 1)
            elif kind == "mfma":
                n_other = {8: 12, 4: 8}[info[0]]
                if I.kind == "mfma":
                    if r in I.srcab:
                        req(p, n_other)
                    if r in I.srcc:
                        if tuple(I.srcc) == info[1] and I.passes == info[0]:
                            pass
                        else:
                            req(p, {8: 10, 4: 6}[info[0]])
                else:
                    req(p, n_other)
            elif kind == "salu":
                if r == ("m0", 0) and I.lds_dma:
                    req(p, 1)
        for r in I.wr:
            w = self.lastw.get(r)
            if w:
                p, kind, info = w
                if kind == "mfma":
                    if I.kind == "mfma" and tuple(I.wr) == info[1] and tuple(I.srcc) == info[1]:
                        pass
                    else:
                        req(p, {8: 12, 4: 8}[info[0]])
                if kind == "valu" and info and info.startswith("dot") and I.mn != info[4:]:
                    req(p, 3)
            c = self.mfma_c_read.get(r)
            if c and I.kind != "mfma":
                req(c[0], {8: 7, 4: 3}[c[1]])
            s = self.store_rd.get(r)
            if s is not None:
                req(s, 2)
        if need > 0:
            self.nop(need)
        p = self.pos
        self.raw(text)
        info = None
        if I.kind == "valu":
            if I.mn.startswith(TRANS):
                info = "trans"
            elif I.mn.startswith("v_dot"):
                info = "dot:" + I.mn
        if I.kind == "mfma":
            info = (I.passes, tuple(I.wr))
            for r in I.srcc:
                self.mfma_c_read[r] = (p, I.passes)
        for r in I.wr:
            self.lastw[r] = (p, I.kind, info)
        if I.kind == "vmem":
            self.vm.append((tag, set(I.wr)))
            if "store" in I.mn and ("x4" in I.mn or "x3" in I.mn):
                for r in I.rd:
                    if r[0] in "va":
                        self.store_rd[r] = p
        if I.kind == "ds":
            self.lg.append((tag, set(I.wr)))

    def text(self):
        return "\n".join(self.lines) + "\n"

    def snapshot(self):
        return ([(t, frozenset(d)) for t, d in self.vm], [(t, frozenset(d)) for t, d in self.lg])


def regs_of_last(I):
    if I.mn.startswith("v_dot2c"):
        return I.wr
    ops = split_ops(I.text.split(";")[0].strip().split(None, 1)[1])
    return regs_of(ops[-1])


def v(a, n=1):
    return "v%d" % a if n == 1 else "v[%d:%d]" % (a, a + n - 1)


def s(a, n=1):
    return "s%d" % a if n == 1 else "s[%d:%d]" % (a, a + n - 1)


class Alloc:
    def __init__(self, start, limit):
        self.n = start
        self.limit = limit

    def __call__(self, n=1, align=None):
        al = align or (4 if n >= 4 else (2 if n >= 2 else 1))
        self.n = (self.n + al - 1) // al * al
        r = self.n
        self.n += n
        assert self.n <= self.limit, "register overflow %d" % self.n
        return r
```

```python
from asmfw import Stream, Alloc, v, s

HB_OFF = 0
NKU = 150
STATS_OFF = 0xA00000
EC_OFF = 0xA10000
WS_BYTES = 0xA20000

SLOT = 49152
SCR = 3 * SLOT
ST_OFF, CS_OFF, MR_OFF, SEG_OFF = SCR, SCR + 4096, SCR + 12288, SCR + 14336

L2E = 0x3fb8aa3b
L2E_LO = 0x32a57060
LN2 = 0x3f317218
INV2PI = 0x3e22f983


def emit_exp(S, dst, src, t0, t1, sL2E, sL2Elo, sLN2):
    S(f"v_mul_f32 {v(t0)}, {s(sL2E)}, {v(src)}")
    S(f"v_fma_f32 {v(t1)}, {v(src)}, {s(sL2E)}, -{v(t0)}")
    S(f"v_fma_f32 {v(t1)}, {v(src)}, {s(sL2Elo)}, {v(t1)}")
    S(f"v_exp_f32 {v(t0)}, {v(t0)}")
    S(f"v_mul_f32 {v(t1)}, {s(sLN2)}, {v(t1)}")
    S(f"v_fma_f32 {v(dst)}, {v(t0)}, {v(t1)}, {v(t0)}")


def emit_bf16r(S, dst, src):
    S(f"v_cvt_pk_bf16_f32 {v(dst)}, {v(src)}, {v(src)}")
    S(f"v_and_b32 {v(dst)}, 0xffff0000, {v(dst)}")


def cmul(S, dr, di, ar, ai, br, bi):
    S(f"v_mul_f32 {v(dr)}, {v(ar)}, {v(br)}")
    S(f"v_mul_f32 {v(di)}, {v(ar)}, {v(bi)}")
    S(f"v_fma_f32 {v(dr)}, -{v(ai)}, {v(bi)}, {v(dr)}")
    S(f"v_fma_f32 {v(di)}, {v(ai)}, {v(br)}, {v(di)}")


def cfma(S, dr, di, ar, ai, br, bi, cr, ci):
    S(f"v_fma_f32 {v(dr)}, {v(ar)}, {v(br)}, {v(cr)}")
    S(f"v_fma_f32 {v(di)}, {v(ar)}, {v(bi)}, {v(ci)}")
    S(f"v_fma_f32 {v(dr)}, -{v(ai)}, {v(bi)}, {v(dr)}")
    S(f"v_fma_f32 {v(di)}, {v(ai)}, {v(br)}, {v(di)}")


def pk(op, d, a, b, c=None, bsel=None, negb=False):
    n = 3 if c is not None else 2
    lo = [0] * n
    hi = [1] * n
    if bsel is not None:
        lo[1] = bsel
        hi[1] = bsel
    t = f"v_pk_{op}_f32 {v(d,2)}, {v(a,2)}, {v(b,2)}"
    if c is not None:
        t += f", {v(c,2)}"
    t += " op_sel:[%s] op_sel_hi:[%s]" % (",".join(map(str, lo)), ",".join(map(str, hi)))
    if negb:
        ng = [0] * n
        ng[1] = 1
        t += " neg_lo:[%s] neg_hi:[%s]" % (",".join(map(str, ng)), ",".join(map(str, ng)))
    return t


def interleave(main, fill):
    out = []
    n = len(main)
    k = 0
    for i, m in enumerate(main):
        out.append(m)
        upto = (len(fill) * (i + 1) + n - 1) // n
        while k < upto:
            out.append(fill[k])
            k += 1
    return out


def gen_k1(name="k1_kernel", stamp=False):
    S = Stream()
    sPTR = 16
    sWG = 32
    sWS = 36
    sX, sS_, sG, sW = 40, 44, 48, 52
    sWave, sTw, sGrp, sRb, sCb = 56, 57, 58, 59, 60
    sMX, sMS, sMG = 61, 62, 63
    sFill = 64
    sOffX, sOffG = 65, 66
    sC = 67
    sDelta = 68
    sRd = 69
    sOnes = 70
    sT0, sT1, sT2 = 71, 72, 73
    sL2E, sL2Elo, sLN2, sI2P = 74, 75, 76, 77
    sStG = 78
    sStS = 80
    sEx = 82
    sDbg = 84
    sTime = 86
    A = Alloc(1, 256)
    vLane = A()
    vX0, vX1, vS_, vG = A(), A(), A(), A()
    vAX = [A() for _ in range(4)]
    vAS = [A() for _ in range(4)]
    vAG = A()
    vSum, vSq = A(), A()
    vCS = A(4)
    vSt0, vSt1 = A(), A()
    vT = A(16)
    vLam = A(2)
    vCoef = A(2)
    vP = A(16)
    vL16 = A(2)
    acc = [A(16) for _ in range(4)]
    FX = [A(4), A(4)]
    FW = [[A(4) for _ in range(4)] for _ in range(2)]
    vM = A(16)
    vR = A(16)
    vSeg = A(16)
    vOut = A(16)
    nvgpr = A.n

    S.label(name)
    S(f"s_cmp_ge_u32 s2, 256")
    S.raw(f"s_cbranch_scc1 {name}_end")
    if stamp:
        S(f"s_memrealtime {s(sTime,2)}")
    S(f"s_load_dwordx16 {s(sPTR,16)}, s[0:1], 0")
    S(f"s_load_dwordx4 {s(sWG,4)}, s[0:1], 80")
    S(f"s_load_dwordx2 {s(sWS,2)}, s[0:1], 120")
    if stamp:
        S(f"s_load_dwordx2 {s(sDbg,2)}, s[0:1], 72")
    S(f"v_and_b32 {v(vLane)}, 63, v0")
    S(f"v_lshrrev_b32 {v(vT)}, 6, v0")
    S(f"v_readfirstlane_b32 {s(sWave)}, {v(vT)}")
    S(f"s_and_b32 {s(sT0)}, s2, 7")
    S(f"s_lshr_b32 {s(sT1)}, s2, 3")
    S(f"s_and_b32 {s(sRb)}, {s(sT0)}, 1")
    S(f"s_lshl_b32 {s(sRb)}, {s(sRb)}, 3")
    S(f"s_and_b32 {s(sT2)}, {s(sT1)}, 7")
    S(f"s_add_u32 {s(sRb)}, {s(sRb)}, {s(sT2)}")
    S(f"s_lshr_b32 {s(sCb)}, {s(sT0)}, 1")
    S(f"s_lshl_b32 {s(sCb)}, {s(sCb)}, 2")
    S(f"s_lshr_b32 {s(sT2)}, {s(sT1)}, 3")
    S(f"s_add_u32 {s(sCb)}, {s(sCb)}, {s(sT2)}")
    S(f"s_and_b32 {s(sTw)}, {s(sWave)}, 3")
    S(f"s_lshr_b32 {s(sGrp)}, {s(sWave)}, 2")
    t0, t1, t2, t3 = vT, vT + 1, vT + 2, vT + 3
    S(f"v_lshrrev_b32 {v(t0)}, 3, {v(vLane)}")
    S(f"v_and_b32 {v(t1)}, 7, {v(vLane)}")
    S(f"v_lshrrev_b32 {v(t2)}, 1, {v(t0)}")
    S(f"v_xor_b32 {v(t3)}, {v(t1)}, {v(t2)}")
    S(f"s_lshl_b32 {s(sT0)}, {s(sRb)}, 7")
    S(f"s_lshl_b32 {s(sT1)}, {s(sWave)}, 4")
    S(f"s_add_u32 {s(sT0)}, {s(sT0)}, {s(sT1)}")
    S(f"v_add_u32 {v(vX0)}, {s(sT0)}, {v(t0)}")
    S(f"v_lshlrev_b32 {v(vX0)}, 10, {v(vX0)}")
    S(f"v_add_u32 {v(vX1)}, {8192 - 1024}, {v(vX0)}")
    S(f"v_lshl_add_u32 {v(vX0)}, {v(t3)}, 4, {v(vX0)}")
    S(f"v_xor_b32 {v(t2)}, 4, {v(t3)}")
    S(f"v_lshl_add_u32 {v(vX1)}, {v(t2)}, 4, {v(vX1)}")
    S(f"s_and_b32 {s(sT0)}, {s(sWave)}, 1")
    S(f"s_lshl_b32 {s(sT0)}, {s(sT0)}, 2")
    S(f"v_xor_b32 {v(t2)}, {s(sT0)}, {v(t3)}")
    S(f"s_lshl_b32 {s(sT0)}, {s(sCb)}, 5")
    S(f"s_lshl_b32 {s(sT1)}, {s(sTw)}, 3")
    S(f"s_add_u32 {s(sT0)}, {s(sT0)}, {s(sT1)}")
    S(f"v_add_u32 {v(vS_)}, {s(sT0)}, {v(t0)}")
    S(f"v_lshlrev_b32 {v(vS_)}, 10, {v(vS_)}")
    S(f"v_lshl_add_u32 {v(vS_)}, {v(t2)}, 4, {v(vS_)}")
    S(f"v_lshrrev_b32 {v(t0)}, 2, {v(vLane)}")
    S(f"s_lshl_b32 {s(sT0)}, {s(sTw)}, 4")
    S(f"v_add_u32 {v(t0)}, {s(sT0)}, {v(t0)}")
    S(f"v_mul_u32_u24 {v(vG)}, 2752, {v(t0)}")
    S(f"v_and_b32 {v(t1)}, 3, {v(vLane)}")
    S(f"v_lshl_add_u32 {v(vG)}, {v(t1)}, 4, {v(vG)}")
    S(f"s_mul_i32 {s(sT0)}, {s(sCb)}, 192")
    S(f"v_add_u32 {v(vG)}, {s(sT0)}, {v(vG)}")
    S(f"s_lshl_b32 {s(sMX)}, {s(sWave)}, 11")
    S(f"s_lshl_b32 {s(sMS)}, {s(sWave)}, 10")
    S(f"s_add_u32 {s(sMS)}, {s(sMS)}, 16384")
    S(f"s_mul_i32 {s(sMG)}, {s(sWave)}, 3072")
    S(f"s_add_u32 {s(sMG)}, {s(sMG)}, 24576")
    S(f"s_mov_b32 {s(sFill)}, 0")
    S(f"s_mov_b32 {s(sOffX)}, 0")
    S(f"s_mov_b32 {s(sOffG)}, 0")
    lr, li, ld = vSeg, vSeg + 1, vSeg + 2
    S(f"v_and_b32 {v(t0)}, 31, {v(vLane)}")
    S(f"s_lshl_b32 {s(sT0)}, {s(sCb)}, 5")
    S(f"v_add_lshl_u32 {v(t0)}, {v(t0)}, {s(sT0)}, 1")
    S.raw("s_waitcnt lgkmcnt(0)")
    S(f"global_load_ushort {v(lr)}, {v(t0)}, {s(sPTR+2,2)}")
    S(f"global_load_ushort {v(li)}, {v(t0)}, {s(sPTR+4,2)}")
    S(f"global_load_ushort {v(ld)}, {v(t0)}, {s(sPTR+14,2)}")
    S(f"s_mov_b32 {s(sX)}, {s(sPTR)}")
    S(f"s_mov_b32 {s(sX+1)}, {s(sPTR+1)}")
    S(f"s_mov_b32 {s(sX+2)}, 0x200000")
    S(f"s_mov_b32 {s(sX+3)}, 0x20000")
    S(f"s_cmp_eq_u32 {s(sGrp)}, 0")
    S(f"s_cselect_b32 {s(sS_)}, {s(sPTR+6)}, {s(sPTR+8)}")
    S(f"s_cselect_b32 {s(sS_+1)}, {s(sPTR+7)}, {s(sPTR+9)}")
    S(f"s_mov_b32 {s(sS_+2)}, 0x80000")
    S(f"s_mov_b32 {s(sS_+3)}, 0x20000")
    S(f"s_cselect_b32 {s(sG)}, {s(sWG)}, {s(sWG+2)}")
    S(f"s_cselect_b32 {s(sG+1)}, {s(sWG+1)}, {s(sWG+3)}")
    S(f"s_mov_b32 {s(sG+2)}, {512*2752}")
    S(f"s_mov_b32 {s(sG+3)}, 0x20000")
    S(f"s_mov_b32 {s(sW)}, {s(sWS)}")
    S(f"s_mov_b32 {s(sW+1)}, {s(sWS+1)}")
    S(f"s_mov_b32 {s(sW+2)}, {WS_BYTES}")
    S(f"s_mov_b32 {s(sW+3)}, 0x20000")

    def dma_list():
        L = []
        L.append(f"s_add_u32 m0, {s(sFill)}, {s(sMX)}")
        L.append(f"buffer_load_dwordx4 {v(vX0)}, {s(sX,4)}, {s(sOffX)} offen lds")
        L.append(f"buffer_load_dwordx4 {v(vX1)}, {s(sX,4)}, {s(sOffX)} offen offset:1024 lds")
        L.append(f"s_add_u32 m0, {s(sFill)}, {s(sMS)}")
        L.append(f"buffer_load_dwordx4 {v(vS_)}, {s(sS_,4)}, {s(sOffX)} offen lds")
        L.append(f"s_add_u32 m0, {s(sFill)}, {s(sMG)}")
        L.append(f"buffer_load_dwordx4 {v(vG)}, {s(sG,4)}, {s(sOffG)} offen lds")
        L.append(f"s_add_u32 m0, m0, {1024-64}")
        L.append(f"buffer_load_dwordx4 {v(vG)}, {s(sG,4)}, {s(sOffG)} offen offset:64 lds")
        L.append(f"s_add_u32 m0, m0, {1024-64}")
        L.append(f"buffer_load_dwordx4 {v(vG)}, {s(sG,4)}, {s(sOffG)} offen offset:128 lds")
        L.append(f"s_add_u32 {s(sOffX)}, {s(sOffX)}, 128")
        L.append(f"s_add_u32 {s(sOffG)}, {s(sOffG)}, {64*2752}")
        L.append(f"s_cmp_ge_u32 {s(sOffX)}, 1024")
        L.append(f"s_cselect_b32 {s(sOffX)}, 0x40000000, {s(sOffX)}")
        L.append(f"s_add_u32 {s(sFill)}, {s(sFill)}, {SLOT}")
        L.append(f"s_cmp_ge_u32 {s(sFill)}, {3*SLOT}")
        L.append(f"s_cselect_b32 {s(sFill)}, 0, {s(sFill)}")
        return L

    for c in range(3):
        for ins in dma_list():
            S(ins, tag="dma")

    S(f"v_and_b32 {v(t0)}, 1, {v(vLane)}")
    S(f"v_lshlrev_b32 {v(t0)}, 3, {v(t0)}")
    S(f"v_bfe_u32 {v(t1)}, {v(vLane)}, 1, 1")
    S(f"v_add_u32 {v(t0)}, {v(t0)}, {v(t1)}")
    S(f"v_bfe_u32 {v(t1)}, {v(vLane)}, 3, 2")
    S(f"v_lshl_add_u32 {v(t0)}, {v(t1)}, 1, {v(t0)}")
    S(f"v_bfe_u32 {v(t1)}, {v(vLane)}, 2, 1")
    S(f"v_lshl_add_u32 {v(t0)}, {v(t1)}, 4, {v(t0)}")
    S(f"s_lshl_b32 {s(sT0)}, {s(sTw)}, 5")
    S(f"v_add_u32 {v(t0)}, {s(sT0)}, {v(t0)}")
    vRow = vT + 8
    S(f"v_mov_b32 {v(vRow)}, {v(t0)}")
    S(f"v_bfe_u32 {v(t1)}, {v(t0)}, 1, 3")
    S(f"v_lshrrev_b32 {v(t2)}, 5, {v(vLane)}")
    vKh = vT + 9
    S(f"v_mov_b32 {v(vKh)}, {v(t2)}")
    S(f"v_xor_b32 {v(t1)}, {v(t1)}, {v(t2)}")
    S(f"v_lshlrev_b32 {v(t0)}, 7, {v(t0)}")
    for ks in range(4):
        S(f"v_xor_b32 {v(t3)}, {2*ks}, {v(t1)}")
        S(f"v_lshl_add_u32 {v(vAX[ks])}, {v(t3)}, 4, {v(t0)}")
    S(f"v_and_b32 {v(t0)}, 31, {v(vLane)}")
    S(f"v_bfe_u32 {v(t1)}, {v(t0)}, 1, 3")
    S(f"v_xor_b32 {v(t1)}, {v(t1)}, {v(t2)}")
    S(f"v_lshlrev_b32 {v(t0)}, 7, {v(t0)}")
    S(f"v_add_u32 {v(t0)}, 16384, {v(t0)}")
    for ks in range(4):
        S(f"v_xor_b32 {v(t3)}, {2*ks}, {v(t1)}")
        S(f"v_lshl_add_u32 {v(vAS[ks])}, {v(t3)}, 4, {v(t0)}")
    S(f"v_bfe_u32 {v(t0)}, {v(vLane)}, 2, 2")
    S(f"v_lshl_add_u32 {v(t0)}, {v(t2)}, 3, {v(t0)}")
    S(f"v_lshlrev_b32 {v(t0)}, 6, {v(t0)}")
    S(f"v_bfe_u32 {v(t1)}, {v(vLane)}, 4, 1")
    S(f"v_lshl_add_u32 {v(t0)}, {v(t1)}, 5, {v(t0)}")
    S(f"v_and_b32 {v(t1)}, 3, {v(vLane)}")
    S(f"v_lshl_add_u32 {v(t0)}, {v(t1)}, 3, {v(t0)}")
    S(f"v_add_u32 {v(vAG)}, 24576, {v(t0)}")
    S(f"v_and_b32 {v(t0)}, 15, {v(vLane)}")
    S(f"v_bfe_u32 {v(t1)}, {v(vLane)}, 4, 1")
    S(f"v_lshlrev_b32 {v(t1)}, 10, {v(t1)}")
    S(f"v_lshlrev_b32 {v(t3)}, 3, {v(t2)}")
    S(f"v_xor_b32 {v(t3)}, {v(t3)}, {v(t0)}")
    S(f"v_lshl_add_u32 {v(t1)}, {v(t2)}, 9, {v(t1)}")
    S(f"v_lshl_add_u32 {v(vSt0)}, {v(t3)}, 4, {v(t1)}")
    S(f"v_xor_b32 {v(t3)}, 4, {v(t3)}")
    S(f"v_lshl_add_u32 {v(vSt1)}, {v(t3)}, 4, {v(t1)}")
    S(f"v_add_u32 {v(vSt1)}, 256, {v(vSt1)}")
    S(f"s_lshl_b32 {s(sT0)}, {s(sRb)}, 2")
    S(f"s_add_u32 {s(sT0)}, {s(sT0)}, {s(sTw)}")
    S(f"s_mul_i32 {s(sT0)}, {s(sT0)}, {NKU}")
    S(f"s_lshl_b32 {s(sT1)}, {s(sCb)}, 2")
    S(f"s_add_u32 {s(sT1)}, {s(sT1)}, 86")
    S(f"s_add_u32 {s(sStS)}, {s(sT0)}, {s(sT1)}")
    S(f"s_lshl_b32 {s(sStS)}, {s(sStS)}, 10")
    S(f"s_mul_i32 {s(sT1)}, {s(sCb)}, 6")
    for j in range(2):
        S(f"s_cmp_eq_u32 {s(sGrp)}, 0")
        S(f"s_cselect_b32 {s(sT2)}, 4, {2*j}")
        S(f"s_add_u32 {s(sT2)}, {s(sT2)}, {s(sT1)}")
        S(f"s_add_u32 {s(sStG+j)}, {s(sT0)}, {s(sT2)}")
        S(f"s_lshl_b32 {s(sStG+j)}, {s(sStG+j)}, 10")
        S(f"s_cmp_ge_u32 {s(sT2)}, 86")
        S(f"s_cselect_b32 {s(sStG+j)}, 0x40000000, {s(sStG+j)}")
    S(f"s_mov_b32 {s(sOnes)}, 0x3f803f80")
    S(f"s_mov_b32 {s(sC)}, 0")
    S(f"s_mov_b32 {s(sRd)}, 0")
    for a in acc:
        for i in range(16):
            S(f"v_mov_b32 {v(a+i)}, 0")
    S(f"v_mov_b32 {v(vSum)}, 0")
    S(f"v_mov_b32 {v(vSq)}, 0")
    for i in range(4):
        S(f"v_mov_b32 {v(vCS+i)}, 0")
    S(f"s_cmp_eq_u32 {s(sGrp)}, 0")
    S.raw(f"s_cbranch_scc0 {name}_g1")
    common_state = (list(S.vm), list(S.lg))

    def reads(grp, ks, buf):
        L = [f"ds_read_b128 {v(FX[buf],4)}, {v(vAX[ks])}"]

        def tr(dst, mat, i):
            base = ((mat * 4 + ks) * 3 + i) * 1024
            return [f"ds_read_b64_tr_b16 {v(dst,2)}, {v(vAG)} offset:{base}",
                    f"ds_read_b64_tr_b16 {v(dst+2,2)}, {v(vAG)} offset:{base+256}"]
        if grp == 0:
            L.append(f"ds_read_b128 {v(FW[buf][0],4)}, {v(vAS[ks])}")
            L.append(f"ds_read_b128 {v(FW[buf][1],4)}, {v(vAS[ks])} offset:4096")
            L += tr(FW[buf][2], 0, 2) + tr(FW[buf][3], 1, 2)
        else:
            L += tr(FW[buf][0], 0, 0) + tr(FW[buf][1], 1, 0) + tr(FW[buf][2], 0, 1) + tr(FW[buf][3], 1, 1)
        return L

    def body(S, grp, lbl):
        for ks in range(4):
            buf = ks & 1
            fill = []
            if ks == 3:
                S.wait_lg(0)
                S.wait_vm(6)
                S.raw("s_barrier")
                upd = [f"s_add_u32 {s(sT0)}, {s(sRd)}, {SLOT}",
                       f"s_cmp_ge_u32 {s(sT0)}, {3*SLOT}",
                       f"s_cselect_b32 {s(sT0)}, 0, {s(sT0)}",
                       f"s_sub_u32 {s(sDelta)}, {s(sT0)}, {s(sRd)}",
                       f"s_mov_b32 {s(sRd)}, {s(sT0)}"]
                regs = vAX + (vAS if grp == 0 else []) + [vAG]
                order = [vAX[0]] + ([vAS[0]] if grp == 0 else []) + [vAG] + [r for r in regs if r not in (vAX[0], vAS[0], vAG)]
                upd += [f"v_add_u32 {v(r)}, {s(sDelta)}, {v(r)}" for r in order]
                nfirst = 5 + (3 if grp == 0 else 2)
                fill += upd[:nfirst] + reads(grp, 0, buf ^ 1) + upd[nfirst:] + dma_list()
            else:
                fill += reads(grp, ks + 1, buf ^ 1)
            if (ks & 1) == grp:
                for i in range(4):
                    fill.append(f"v_dot2c_f32_bf16 {v(vSum)}, {s(sOnes)}, {v(FX[buf]+i)}")
                    fill.append(f"v_dot2c_f32_bf16 {v(vSq)}, {v(FX[buf]+i)}, {v(FX[buf]+i)}")
            main = [f"v_mfma_f32_32x32x16_bf16 {v(acc[b],16)}, {v(FX[buf],4)}, {v(FW[buf][b],4)}, {v(acc[b],16)}" for b in range(4)]
            for ins in interleave(main, fill):
                S(ins, tag="dma" if "lds" in ins.split()[-1:] else None)
            S(f"s_cmp_eq_u32 {s(sTw)}, {ks}")
            S.raw(f"s_cbranch_scc0 {lbl}_cs{ks}")
            p0 = S.pos
            for i in range(4):
                for b in range(4):
                    S(f"v_dot2c_f32_bf16 {v(vCS+b)}, {s(sOnes)}, {v(FW[buf][b]+i)}")
            S.pos = p0
            for b in range(4):
                S.lastw[("v", vCS + b)] = (p0 - 1, "valu", "dot:v_dot2c_f32_bf16")
            S.label(f"{lbl}_cs{ks}")

    def stats_epilogue(S, grp):
        a0, a1 = vT, vT + 1
        S(f"v_lshl_add_u32 {v(a0)}, {v(vKh)}, 7, {v(vRow)}")
        S(f"v_lshlrev_b32 {v(a0)}, 3, {v(a0)}")
        S(f"v_add_u32 {v(a0)}, {ST_OFF + grp*2048}, {v(a0)}")
        S(f"ds_write2_b32 {v(a0)}, {v(vSum)}, {v(vSq)} offset0:0 offset1:1")
        S(f"v_and_b32 {v(a1)}, 31, {v(vLane)}")
        S(f"v_lshlrev_b32 {v(a1)}, 5, {v(a1)}")
        vCsRd = vT + 2
        S(f"v_add_u32 {v(vCsRd)}, {CS_OFF + grp*4096}, {v(a1)}")
        S(f"s_lshl_b32 {s(sT0)}, {s(sTw)}, 3")
        S(f"v_lshl_add_u32 {v(a1)}, {v(vKh)}, 2, {v(vCsRd)}")
        S(f"v_add_u32 {v(a1)}, {s(sT0)}, {v(a1)}")
        for b in range(4):
            S(f"ds_write_b32 {v(a1)}, {v(vCS+b)} offset:{b*1024}")
        S.wait_lg(0)
        S.raw("s_barrier")
        S(f"v_and_b32 {v(a0)}, 31, {v(vLane)}")
        S(f"s_lshl_b32 {s(sT0)}, {s(sTw)}, 8")
        S(f"s_add_u32 {s(sT0)}, {s(sT0)}, {ST_OFF}")
        S(f"v_lshl_add_u32 {v(a1)}, {v(a0)}, 3, {s(sT0)}")
        pr = vSeg
        for j in range(4):
            S(f"ds_read_b64 {v(pr+2*j,2)}, {v(a1)} offset:{j*1024}")
        cs = [FW[0][0], FW[0][2], FW[1][0], FW[1][2]]
        assert FW[0][1] == FW[0][0] + 4 and FW[0][3] == FW[0][2] + 4 and FW[1][1] == FW[1][0] + 4 and FW[1][3] == FW[1][2] + 4
        for b in range(4):
            S(f"ds_read_b128 {v(cs[b],4)}, {v(vCsRd)} offset:{b*1024}")
            S(f"ds_read_b128 {v(cs[b]+4,4)}, {v(vCsRd)} offset:{b*1024+16}")
        S(pk("add", pr, pr, pr + 2))
        S(pk("add", pr + 4, pr + 4, pr + 6))
        S(pk("add", pr, pr, pr + 4))
        mean, ex2, var, m_b, r_ = vT + 3, vT + 4, vT + 5, vT + 6, vT + 7
        S(f"v_mul_f32 {v(mean)}, {1.0/512}, {v(pr)}")
        S(f"v_mul_f32 {v(ex2)}, {1.0/512}, {v(pr+1)}")
        S(f"v_fma_f32 {v(var)}, -{v(mean)}, {v(mean)}, {v(ex2)}")
        S(f"v_max_f32 {v(var)}, 0, {v(var)}")
        emit_bf16r(S, m_b, mean)
        emit_bf16r(S, var, var)
        S(f"v_add_f32 {v(var)}, 0x3727c5ac, {v(var)}")
        emit_bf16r(S, var, var)
        S(f"v_sqrt_f32 {v(var)}, {v(var)}")
        emit_bf16r(S, var, var)
        S(f"v_rcp_f32 {v(r_)}, {v(var)}")
        S(f"v_and_b32 {v(a1)}, 7, {v(vLane)}")
        S(f"v_bfe_u32 {v(var)}, {v(vLane)}, 3, 1")
        S(f"v_lshl_add_u32 {v(a1)}, {v(a1)}, 1, {v(var)}")
        S(f"v_bfe_u32 {v(var)}, {v(vLane)}, 4, 1")
        S(f"v_lshl_add_u32 {v(a1)}, {v(var)}, 4, {v(a1)}")
        S(f"s_lshl_b32 {s(sT0)}, {s(sWave)}, 8")
        S(f"s_add_u32 {s(sT0)}, {s(sT0)}, {MR_OFF}")
        S(f"v_lshl_add_u32 {v(a1)}, {v(a1)}, 2, {s(sT0)}")
        S(f"ds_write2_b32 {v(a1)}, {v(m_b)}, {v(r_)} offset0:0 offset1:32")
        S(f"v_lshl_add_u32 {v(a1)}, {v(vKh)}, 6, {s(sT0)}")
        for b in range(4):
            S(pk("add", cs[b], cs[b], cs[b] + 2))
            S(pk("add", cs[b] + 4, cs[b] + 4, cs[b] + 6))
            S(pk("add", cs[b], cs[b], cs[b] + 4))
            S(f"v_add_f32 {v(vCS+b)}, {v(cs[b])}, {v(cs[b]+1)}")
        S.wait_lg(0)
        for j in range(4):
            S(f"ds_read_b128 {v(vM+4*j,4)}, {v(a1)} offset:{16*j}")
        for j in range(4):
            S(f"ds_read_b128 {v(vR+4*j,4)}, {v(a1)} offset:{128+16*j}")
        if grp == 0:
            S(f"s_lshl_b32 {s(sT0)}, {s(sRb)}, 10")
            S(f"s_lshl_b32 {s(sT1)}, {s(sTw)}, 8")
            S(f"s_add_u32 {s(sT0)}, {s(sT0)}, {s(sT1)}")
            S(f"s_add_u32 {s(sT0)}, {s(sT0)}, {STATS_OFF}")
            S(f"s_cmp_eq_u32 {s(sCb)}, 0")
            S(f"s_cselect_b32 {s(sT0)}, {s(sT0)}, 0x40000000")
            S(f"v_lshlrev_b32 {v(a0)}, 3, {v(a0)}")
            assert r_ == m_b + 1 and m_b % 2 == 0
            S(f"buffer_store_dwordx2 {v(m_b,2)}, {v(a0)}, {s(sW,4)}, {s(sT0)} offen")

    def pack_store(S, src, soff, imm, out):
        for q in range(2):
            for jj in range(4):
                S(f"v_cvt_pk_bf16_f32 {v(out+4*q+jj)}, {v(src + 4*jj + q)}, {v(src + 4*jj + 2 + q)}")
        S(f"buffer_store_dwordx4 {v(out,4)}, {v(vSt0)}, {s(sW,4)}, {s(soff)} offen offset:{imm}")
        S(f"buffer_store_dwordx4 {v(out+4,4)}, {v(vSt1)}, {s(sW,4)}, {s(soff)} offen offset:{imm}")

    def glu_epilogue(S, G, U, cspair, soff, out, R2):
        for j in range(8):
            S(pk("fma", G + 2 * j, vM + 2 * j, cspair, G + 2 * j, bsel=0, negb=True))
            S(pk("fma", U + 2 * j, vM + 2 * j, cspair, U + 2 * j, bsel=1, negb=True))
        for i in range(16):
            S(f"v_max_f32 {v(G+i)}, 0, {v(G+i)}")
        for j in range(8):
            S(pk("mul", U + 2 * j, U + 2 * j, R2 + 2 * j))
        for j in range(8):
            S(pk("mul", G + 2 * j, G + 2 * j, U + 2 * j))
        pack_store(S, G, soff, 0, out)

    def loop(S, grp):
        lbl = f"{name}_L{grp}"
        S.wait_vm(12)
        S.raw("s_barrier")
        for ins in reads(grp, 0, 0):
            S(ins)
        import copy
        T = copy.deepcopy(S)
        n0 = len(T.lines)
        body(T, grp, lbl)
        b1 = T.lines[n0:]
        T("s_add_u32 s67, s67, 1")
        T("s_cmp_lt_u32 s67, 8")
        T.raw("s_nop 0")
        n1 = len(T.lines)
        body(T, grp, lbl)
        b2 = T.lines[n1:]
        assert b1 == b2, "loop body not at fixpoint:\n" + "\n".join(a + "  |  " + b for a, b in zip(b1, b2) if a != b)
        S.label(lbl)
        body(S, grp, lbl)
        S(f"s_add_u32 {s(sC)}, {s(sC)}, 1")
        S(f"s_cmp_lt_u32 {s(sC)}, 8")
        S.raw(f"s_cbranch_scc1 {lbl}")
        S.wait_lg(0)

    def finish(S):
        if stamp:
            S.wait_vm(0)
            S(f"s_memrealtime {s(sTime+2,2)}")
            S.raw("s_waitcnt lgkmcnt(0)")
            S(f"s_lshl_b32 {s(sT0)}, s2, 3")
            S(f"s_add_u32 {s(sT0)}, {s(sT0)}, {s(sWave)}")
            S(f"s_lshl_b32 {s(sT0)}, {s(sT0)}, 4")
            S(f"v_mov_b32 {v(vT)}, {s(sTime)}")
            S(f"v_mov_b32 {v(vT+1)}, {s(sTime+2)}")
            S(f"v_mov_b32 {v(vT+2)}, {s(sTime+4)}")
            S(f"v_mov_b32 {v(vT+3)}, {s(sTime+6)}")
            S(f"v_mov_b32 {v(vT+4)}, {s(sT0)}")
            S(f"global_store_dwordx4 {v(vT+4)}, {v(vT,4)}, {s(sDbg,2)}")
        S.raw("s_endpgm")

    S(f"s_mov_b32 {s(sL2E)}, {L2E}")
    S(f"s_mov_b32 {s(sL2Elo)}, {L2E_LO}")
    S(f"s_mov_b32 {s(sLN2)}, {LN2}")
    S(f"s_mov_b32 {s(sI2P)}, {INV2PI}")
    emit_lambda(S, lr, li, ld, vLam, vCoef, vSeg + 4, (sL2E, sL2Elo, sLN2, sI2P))
    S(f"v_mov_b32 {v(vP)}, {v(vLam)}")
    S(f"v_mov_b32 {v(vP+1)}, {v(vLam+1)}")
    for j in range(1, 8):
        cmul(S, vP + 2 * j, vP + 2 * j + 1, vP + 2 * j - 2, vP + 2 * j - 1, vLam, vLam + 1)
    cmul(S, vL16, vL16 + 1, vP + 14, vP + 15, vP + 14, vP + 15)
    loop(S, 0)
    if stamp:
        S(f"s_memrealtime {s(sTime+4,2)}")
    stats_epilogue(S, 0)
    are, aim = acc[0], acc[1]
    tA, tB = vOut, vOut + 2
    for j in range(8):
        S(pk("fma", are + 2 * j, vM + 2 * j, vCS, are + 2 * j, bsel=0, negb=True))
        S(pk("fma", aim + 2 * j, vM + 2 * j, vCS, aim + 2 * j, bsel=1, negb=True))
    for j in range(8):
        S(pk("mul", are + 2 * j, are + 2 * j, vR + 2 * j))
        S(pk("mul", aim + 2 * j, aim + 2 * j, vR + 2 * j))
    for j in range(8):
        ta = vOut + 4 * (j & 1)
        tb = ta + 2
        S(pk("mul", ta, are + 2 * j, vCoef, bsel=0))
        S(pk("mul", tb, are + 2 * j, vCoef, bsel=1))
        S(pk("fma", are + 2 * j, aim + 2 * j, vCoef, ta, bsel=1))
        S(pk("fma", aim + 2 * j, aim + 2 * j, vCoef, tb, bsel=0, negb=True))
    for j in range(1, 8):
        S(pk("fma", are + 2 * j, are + 2 * j - 2, vLam, are + 2 * j, bsel=0))
        S(pk("fma", aim + 2 * j, aim + 2 * j - 2, vLam, aim + 2 * j, bsel=0))
        S(pk("fma", are + 2 * j, aim + 2 * j - 2, vLam, are + 2 * j, bsel=1, negb=True))
        S(pk("fma", aim + 2 * j, are + 2 * j - 2, vLam, aim + 2 * j, bsel=1))
    e0 = vT + 10
    assert e0 % 2 == 0
    cfma(S, e0, e0 + 1, vP + 14, vP + 15, are + 14, aim + 14, are + 15, aim + 15)
    a0, a1 = vT, vT + 1
    S(f"v_and_b32 {v(a0)}, 31, {v(vLane)}")
    S(f"v_lshlrev_b32 {v(a0)}, 6, {v(a0)}")
    S(f"v_add_u32 {v(a0)}, {SEG_OFF}, {v(a0)}")
    S(f"s_lshl_b32 {s(sT0)}, {s(sTw)}, 1")
    vSidx = vT + 2
    S(f"v_add_u32 {v(vSidx)}, {s(sT0)}, {v(vKh)}")
    S(f"v_lshl_add_u32 {v(a1)}, {v(vSidx)}, 3, {v(a0)}")
    S(f"ds_write_b64 {v(a1)}, {v(e0,2)}")
    S.wait_lg(0)
    S.raw("s_barrier")
    for j in range(4):
        S(f"ds_read_b128 {v(vSeg+4*j,4)}, {v(a0)} offset:{16*j}")
    for j in range(8):
        S(pk("mul", vR + 2 * j, vR + 2 * j, vR + 2 * j))
    glu_epilogue(S, acc[2], acc[3], vCS + 2, sStG + 1, vOut, vR)
    pf = [vT + 4, vT + 6]
    cin = vT + 12
    S(f"v_mov_b32 {v(cin)}, 0")
    S(f"v_mov_b32 {v(cin+1)}, 0")
    cur = vSeg
    for j in range(1, 8):
        S(f"v_cmp_eq_u32 vcc, {j}, {v(vSidx)}")
        nxt = pf[j & 1]
        cfma(S, nxt, nxt + 1, vL16, vL16 + 1, cur, cur + 1, vSeg + 2 * j, vSeg + 2 * j + 1)
        S(f"v_cndmask_b32 {v(cin)}, {v(cin)}, {v(cur)}, vcc")
        S(f"v_cndmask_b32 {v(cin+1)}, {v(cin+1)}, {v(cur+1)}, vcc")
        cur = nxt
    S(f"s_lshl_b32 {s(sT0)}, {s(sRb)}, 12")
    S(f"s_lshl_b32 {s(sT1)}, {s(sCb)}, 8")
    S(f"s_add_u32 {s(sT0)}, {s(sT0)}, {s(sT1)}")
    S(f"s_add_u32 {s(sT0)}, {s(sT0)}, {EC_OFF}")
    S(f"s_cmp_eq_u32 {s(sTw)}, 0")
    S(f"s_cselect_b32 {s(sT0)}, {s(sT0)}, 0x40000000")
    S(f"v_and_b32 {v(a0)}, 31, {v(vLane)}")
    S(f"v_lshlrev_b32 {v(a0)}, 3, {v(a0)}")
    S(f"buffer_store_dwordx2 {v(cur,2)}, {v(a0)}, {s(sW,4)}, {s(sT0)} offen")
    CR, CI = vSeg, vSeg + 2
    S(f"v_mov_b32 {v(CR)}, {v(cin)}")
    S(f"v_mov_b32 {v(CI)}, {v(cin+1)}")
    cfma(S, CR + 1, CI + 1, vP + 14, vP + 15, cin, cin + 1, are + 14, aim + 14)
    for j in range(8):
        S(pk("fma", are + 2 * j, CR, vP + 2 * j, are + 2 * j, bsel=0))
        S(pk("fma", aim + 2 * j, CI, vP + 2 * j, aim + 2 * j, bsel=0))
        S(pk("fma", are + 2 * j, CI, vP + 2 * j, are + 2 * j, bsel=1, negb=True))
        S(pk("fma", aim + 2 * j, CR, vP + 2 * j, aim + 2 * j, bsel=1))
    pack_store(S, are, sStS, 0, vOut + 8)
    pack_store(S, aim, sStS, 2048, vM)
    finish(S)

    S.label(f"{name}_g1")
    S.vm, S.lg = list(common_state[0]), list(common_state[1])
    S.pos += 100
    loop(S, 1)
    if stamp:
        S(f"s_memrealtime {s(sTime+4,2)}")
    stats_epilogue(S, 1)
    for j in range(8):
        S(pk("mul", vR + 2 * j, vR + 2 * j, vR + 2 * j))
    glu_epilogue(S, acc[0], acc[1], vCS, sStG, vOut, vR)
    S.raw("s_barrier")
    glu_epilogue(S, acc[2], acc[3], vCS + 2, sStG + 1, vOut + 8, vR)
    finish(S)
    S.label(f"{name}_end")
    S.raw("s_endpgm")
    return S, nvgpr


def emit_lambda(S, lr, li, ld, vLam, vCoef, tmp, consts, want_ab=None):
    sL2E, sL2Elo, sLN2, sI2P = consts
    t = [tmp + i for i in range(8)]
    S(f"v_lshlrev_b32 {v(lr)}, 16, {v(lr)}")
    S(f"v_lshlrev_b32 {v(li)}, 16, {v(li)}")
    S(f"v_lshlrev_b32 {v(ld)}, 16, {v(ld)}")
    emit_exp(S, ld, ld, t[0], t[1], sL2E, sL2Elo, sLN2)
    emit_bf16r(S, ld, ld)
    S(f"v_mul_f32 {v(t[2])}, {v(ld)}, {v(lr)}")
    S(f"v_mul_f32 {v(t[3])}, {v(ld)}, {v(li)}")
    S(f"v_mul_f32 {v(t[3])}, {s(sI2P)}, {v(t[3])}")
    if want_ab is not None:
        S(f"v_mov_b32 {v(want_ab)}, {v(t[2])}")
        S(f"v_mov_b32 {v(want_ab+1)}, {v(t[3])}")
    emit_exp(S, t[2], t[2], t[0], t[1], sL2E, sL2Elo, sLN2)
    S(f"v_rndne_f32 {v(t[4])}, {v(t[3])}")
    S(f"v_sub_f32 {v(t[3])}, {v(t[3])}, {v(t[4])}")
    S(f"v_cos_f32 {v(t[4])}, {v(t[3])}")
    S(f"v_sin_f32 {v(t[5])}, {v(t[3])}")
    S(f"v_mul_f32 {v(vLam)}, {v(t[2])}, {v(t[4])}")
    S(f"v_mul_f32 {v(t[5])}, {v(t[2])}, {v(t[5])}")
    if vCoef is not None:
        S(f"v_add_f32 {v(t[4])}, -1.0, {v(vLam)}")
        S(f"v_mul_f32 {v(t[0])}, {v(lr)}, {v(lr)}")
        S(f"v_fma_f32 {v(t[0])}, {v(li)}, {v(li)}, {v(t[0])}")
        S(f"v_rcp_f32 {v(t[0])}, {v(t[0])}")
        S(f"v_mul_f32 {v(t[1])}, {v(t[4])}, {v(lr)}")
        S(f"v_fma_f32 {v(t[1])}, {v(t[5])}, {v(li)}, {v(t[1])}")
        S(f"v_mul_f32 {v(t[6])}, {v(t[4])}, {v(li)}")
        S(f"v_fma_f32 {v(t[6])}, -{v(t[5])}, {v(lr)}, {v(t[6])}")
        S(f"v_add_f32 {v(t[0])}, {v(t[0])}, {v(t[0])}")
        S(f"v_mul_f32 {v(vCoef)}, {v(t[1])}, {v(t[0])}")
        S(f"v_mul_f32 {v(vCoef+1)}, {v(t[6])}, {v(t[0])}")
    S(f"v_sub_f32 {v(vLam+1)}, 0, {v(t[5])}")


def kernel_desc(name, nvgpr, nsgpr=102):
    nv = (nvgpr + 7) // 8 * 8
    return f""".p2align 6
.amdhsa_kernel {name}
  .amdhsa_next_free_vgpr {nv}
  .amdhsa_next_free_sgpr {nsgpr}
  .amdhsa_accum_offset {nv}
  .amdhsa_group_segment_fixed_size 0
  .amdhsa_kernarg_size 128
  .amdhsa_user_sgpr_count 2
  .amdhsa_user_sgpr_kernarg_segment_ptr 1
  .amdhsa_system_sgpr_workgroup_id_x 1
  .amdhsa_float_denorm_mode_32 3
.end_amdhsa_kernel
"""
```

```python
from asmfw import Stream, Alloc, v, s
from k1 import (NKU, STATS_OFF, EC_OFF, WS_BYTES, L2E, L2E_LO, LN2, INV2PI, emit_lambda, emit_bf16r, cmul, cfma,
                interleave)

SLOT = 32768
A2_OFF = 4 * SLOT
NST = 19
NZ = 11


def units_of(st):
    return 6 if st == NZ - 1 else 8


def gen_k2(name="k2_kernel", stamp=False):
    S = Stream()
    sPTR = 16
    sP2 = 32
    sP3 = 36
    sWS = 34
    sH, sWd, sCm, sX, sO = 40, 44, 48, 52, 56
    sWave, sR2, sC2, sPw, sRb = 60, 61, 62, 63, 64
    sMA, sMB = 65, 66
    sOffA = 67
    sT0, sT1, sT2 = 68, 69, 70
    sL2E, sL2Elo, sLN2, sI2P = 72, 73, 74, 75
    sRow = 76
    sDbg = 84
    sTime = 86
    sOffB = 94

    A = Alloc(1, 256)
    vLane = A()
    vDA = A()
    vBz0, vBz1, vBy0, vBy1 = A(), A(), A(), A()
    vT = A(16)
    common_end = A.n

    S.label(name)
    S("s_cmp_ge_u32 s2, 256")
    S.raw(f"s_cbranch_scc1 {name}_end")
    if stamp:
        S(f"s_memrealtime {s(sTime,2)}")
    S(f"s_load_dwordx16 {s(sPTR,16)}, s[0:1], 0")
    S(f"s_load_dwordx2 {s(sP2,2)}, s[0:1], 64")
    S(f"s_load_dwordx4 {s(sP3,4)}, s[0:1], 96")
    S(f"s_load_dwordx2 {s(sWS,2)}, s[0:1], 120")
    if stamp:
        S(f"s_load_dwordx2 {s(sDbg,2)}, s[0:1], 72")
    S(f"v_and_b32 {v(vLane)}, 63, v0")
    S(f"v_lshrrev_b32 {v(vT)}, 6, v0")
    S(f"v_readfirstlane_b32 {s(sWave)}, {v(vT)}")
    S(f"s_and_b32 {s(sT0)}, s2, 1")
    S(f"s_lshl_b32 {s(sR2)}, {s(sT0)}, 4")
    S(f"s_and_b32 {s(sT0)}, s2, 2")
    S(f"s_lshl_b32 {s(sT0)}, {s(sT0)}, 2")
    S(f"s_add_u32 {s(sR2)}, {s(sR2)}, {s(sT0)}")
    S(f"s_lshr_b32 {s(sT1)}, s2, 3")
    S(f"s_and_b32 {s(sT0)}, {s(sT1)}, 7")
    S(f"s_add_u32 {s(sR2)}, {s(sR2)}, {s(sT0)}")
    S(f"s_and_b32 {s(sC2)}, s2, 4")
    S(f"s_lshr_b32 {s(sT0)}, {s(sT1)}, 3")
    S(f"s_add_u32 {s(sC2)}, {s(sC2)}, {s(sT0)}")
    S(f"s_lshr_b32 {s(sRb)}, {s(sR2)}, 1")
    S(f"s_and_b32 {s(sPw)}, {s(sWave)}, 3")
    t0, t1, t2, t3 = vT, vT + 1, vT + 2, vT + 3
    S(f"v_lshlrev_b32 {v(vDA)}, 4, {v(vLane)}")
    S(f"s_lshl_b32 {s(sT0)}, {s(sR2)}, 1")
    S(f"s_lshr_b32 {s(sT1)}, {s(sWave)}, 2")
    S(f"s_add_u32 {s(sT0)}, {s(sT0)}, {s(sT1)}")
    S(f"s_mul_i32 {s(sT0)}, {s(sT0)}, {NKU}")
    S(f"s_lshl_b32 {s(sT1)}, {s(sPw)}, 1")
    S(f"s_add_u32 {s(sT0)}, {s(sT0)}, {s(sT1)}")
    S(f"s_lshl_b32 {s(sOffA)}, {s(sT0)}, 10")
    S(f"s_lshl_b32 {s(sMA)}, {s(sWave)}, 11")
    S(f"s_add_u32 {s(sMB)}, {s(sMA)}, 16384")
    S(f"v_lshrrev_b32 {v(t0)}, 3, {v(vLane)}")
    S(f"v_and_b32 {v(t1)}, 7, {v(vLane)}")
    S(f"v_bfe_u32 {v(t2)}, {v(vLane)}, 4, 1")
    S(f"v_lshlrev_b32 {v(t2)}, 2, {v(t2)}")
    S(f"v_xor_b32 {v(t2)}, {v(t2)}, {v(t1)}")
    S(f"s_lshl_b32 {s(sT0)}, {s(sWave)}, 4")
    S(f"v_add_u32 {v(t3)}, {s(sT0)}, {v(t0)}")
    S(f"v_lshlrev_b32 {v(t3)}, 10, {v(t3)}")
    S(f"v_lshl_add_u32 {v(t3)}, {v(t2)}, 4, {v(t3)}")
    S(f"s_lshl_b32 {s(sT0)}, {s(sC2)}, 7")
    S(f"v_add_u32 {v(vBz0)}, {s(sT0)}, {v(t3)}")
    S(f"v_add_u32 {v(vBz1)}, {8192-1024}, {v(vBz0)}")
    S(f"v_lshrrev_b32 {v(t2)}, 1, {v(t0)}")
    S(f"v_xor_b32 {v(t2)}, {v(t2)}, {v(t1)}")
    S(f"s_lshl_b32 {s(sT0)}, {s(sC2)}, 6")
    S(f"s_lshl_b32 {s(sT1)}, {s(sPw)}, 4")
    S(f"s_add_u32 {s(sT0)}, {s(sT0)}, {s(sT1)}")
    S(f"v_add_u32 {v(t3)}, {s(sT0)}, {v(t0)}")
    S(f"v_lshlrev_b32 {v(t3)}, 10, {v(t3)}")
    S(f"v_lshl_add_u32 {v(vBy0)}, {v(t2)}, 4, {v(t3)}")
    S(f"v_xor_b32 {v(t2)}, 4, {v(t2)}")
    S(f"v_lshl_add_u32 {v(vBy1)}, {v(t2)}, 4, {v(t3)}")
    S(f"v_add_u32 {v(vBy1)}, {8192-1024}, {v(vBy1)}")
    S.raw("s_waitcnt lgkmcnt(0)")

    def srd(d, p, n):
        S(f"s_mov_b32 {s(d)}, {s(p)}")
        S(f"s_mov_b32 {s(d+1)}, {s(p+1)}")
        S(f"s_mov_b32 {s(d+2)}, {n}")
        S(f"s_mov_b32 {s(d+3)}, 0x20000")
    srd(sH, sWS, WS_BYTES)
    srd(sWd, sP3, 1376 * 1024)
    S(f"s_cmp_lt_u32 {s(sWave)}, 4")
    S(f"s_cselect_b32 {s(sCm)}, {s(sPTR+10)}, {s(sPTR+12)}")
    S(f"s_cselect_b32 {s(sCm+1)}, {s(sPTR+11)}, {s(sPTR+13)}")
    S(f"s_mov_b32 {s(sCm+2)}, 0x80000")
    S(f"s_mov_b32 {s(sCm+3)}, 0x20000")

    def dma_list(st):
        if st >= NST:
            return []
        slot = (st % 4) * SLOT
        ku0 = 8 * st if st < NZ else 86 + 8 * (st - NZ)
        L = [f"s_add_u32 m0, {s(sMA)}, {slot}",
             f"s_add_u32 {s(sT0)}, {s(sOffA)}, {ku0*1024}",
             f"buffer_load_dwordx4 {v(vDA)}, {s(sH,4)}, {s(sT0)} offen lds",
             f"buffer_load_dwordx4 {v(vDA)}, {s(sH,4)}, {s(sT0)} offen offset:1024 lds",
             f"s_add_u32 m0, {s(sMB)}, {slot}"]
        if st < NZ:
            L += [f"s_mov_b32 {s(sOffB)}, {st*131072}",
                  f"buffer_load_dwordx4 {v(vBz0)}, {s(sWd,4)}, {s(sOffB)} offen lds",
                  f"buffer_load_dwordx4 {v(vBz1)}, {s(sWd,4)}, {s(sOffB)} offen offset:1024 lds"]
        else:
            L += [f"s_mov_b32 {s(sOffB)}, {(st-NZ)*128}",
                  f"buffer_load_dwordx4 {v(vBy0)}, {s(sCm,4)}, {s(sOffB)} offen lds",
                  f"buffer_load_dwordx4 {v(vBy1)}, {s(sCm,4)}, {s(sOffB)} offen offset:1024 lds"]
        return L

    def emit_list(S, L, st_tag=None):
        for ins in L:
            S(ins, tag=st_tag if ins.endswith("lds") else None)

    for st in range(4):
        emit_list(S, dma_list(st), ("st", st))
    S(f"s_cmp_lt_u32 {s(sWave)}, 4")
    S.raw(f"s_cbranch_scc0 {name}_prod")
    common_state = (list(S.vm), list(S.lg))

    def finish(S):
        if stamp:
            S.wait_vm(0)
            S(f"s_memrealtime {s(sTime+2,2)}")
            S.raw("s_waitcnt lgkmcnt(0)")
            S(f"s_lshl_b32 {s(sT0)}, s2, 3")
            S(f"s_add_u32 {s(sT0)}, {s(sT0)}, {s(sWave)}")
            S(f"s_lshl_b32 {s(sT0)}, {s(sT0)}, 4")
            S(f"s_add_u32 {s(sT0)}, {s(sT0)}, 0x10000")
            S(f"v_mov_b32 {v(vT)}, {s(sTime)}")
            S(f"v_mov_b32 {v(vT+1)}, {s(sTime+2)}")
            S(f"v_mov_b32 {v(vT+2)}, {s(sTime+4)}")
            S(f"v_mov_b32 {v(vT+3)}, {s(sTime+6)}")
            S(f"v_mov_b32 {v(vT+4)}, {s(sT0)}")
            S(f"global_store_dwordx4 {v(vT+4)}, {v(vT,4)}, {s(sDbg,2)}")
        S.raw("s_endpgm")

    A = Alloc(common_end, 256)
    bAA = [A(), A()]
    bBz = A()
    bBy = [A() for _ in range(4)]
    cAA = [A(), A()]
    cA2 = [A(), A()]
    cBz = A()
    cBy = [A() for _ in range(4)]
    vOo = A()
    vD = A()
    accZ, accY = A(16), A(16)
    FA = [A(4), A(4)]
    FA2 = [A(4), A(4)]
    FB = [A(4), A(4)]
    vXf = A(16)
    vSk = A(16)
    vG = A(16)
    vMR = A(32)
    ncons = A.n
    srd(sX, sPTR, 0x200000)
    srd(sO, sP3 + 2, 0x400000)
    sMb, sNb = sT1, sT2
    S(f"s_lshr_b32 {s(sMb)}, {s(sWave)}, 1")
    S(f"s_and_b32 {s(sNb)}, {s(sWave)}, 1")
    kh, g1, r_, c_ = vT + 4, vT + 5, vT + 6, vT + 7
    S(f"v_lshrrev_b32 {v(kh)}, 5, {v(vLane)}")
    S(f"v_bfe_u32 {v(g1)}, {v(vLane)}, 4, 1")
    S(f"v_bfe_u32 {v(r_)}, {v(vLane)}, 2, 2")
    S(f"v_and_b32 {v(c_)}, 3, {v(vLane)}")
    S(f"v_and_b32 {v(t0)}, 31, {v(vLane)}")
    S(f"s_lshl_b32 {s(sT0)}, {s(sC2)}, 6")
    S(f"v_add_u32 {v(t0)}, {s(sT0)}, {v(t0)}")
    S(f"s_lshl_b32 {s(sT0)}, {s(sNb)}, 5")
    S(f"v_add_u32 {v(t0)}, {s(sT0)}, {v(t0)}")
    S(f"s_lshl_b32 {s(sT0)}, {s(sR2)}, 6")
    S(f"v_lshl_add_u32 {v(t1)}, {v(kh)}, 2, {s(sT0)}")
    S(f"s_lshl_b32 {s(sT0)}, {s(sMb)}, 5")
    S(f"v_add_u32 {v(t1)}, {s(sT0)}, {v(t1)}")
    S(f"v_lshlrev_b32 {v(t2)}, 10, {v(t1)}")
    S(f"v_lshl_add_u32 {v(t2)}, {v(t0)}, 1, {v(t2)}")
    S(f"v_lshlrev_b32 {v(vOo)}, 1, {v(t2)}")
    for j in range(8):
        S(f"s_mov_b32 {s(sRow+j)}, {j*4096 if False else ((j>>1)*8 + (j&1)*2)*2048}")
    S(f"v_lshlrev_b32 {v(t3)}, 1, {v(t0)}")
    S(f"global_load_ushort {v(vD)}, {v(t3)}, {s(sP2,2)}")
    for a in range(4):
        S(f"s_mov_b32 {s(sT0)}, {a*8192}")
        for b in range(4):
            S(f"buffer_load_ushort {v(vXf+4*a+b)}, {v(t2)}, {s(sX,4)}, {s(sT0)} offen offset:{b*1024}")
    S(f"v_lshlrev_b32 {v(t3)}, 3, {v(t1)}")
    S(f"s_mov_b32 {s(sT0)}, {STATS_OFF}")
    for a in range(4):
        S(f"buffer_load_dwordx4 {v(vMR+8*a,4)}, {v(t3)}, {s(sH,4)}, {s(sT0)} offen offset:{a*64}")
        S(f"buffer_load_dwordx4 {v(vMR+8*a+4,4)}, {v(t3)}, {s(sH,4)}, {s(sT0)} offen offset:{a*64+16}")
    S(f"v_lshrrev_b32 {v(t0)}, 1, {v(c_)}")
    S(f"v_lshl_add_u32 {v(t0)}, {v(g1)}, 1, {v(t0)}")
    S(f"v_lshl_add_u32 {v(t1)}, {v(kh)}, 3, {v(r_)}")
    S(f"v_lshlrev_b32 {v(t2)}, 2, {v(t0)}")
    S(f"v_xor_b32 {v(t2)}, {v(t2)}, {v(t1)}")
    S(f"v_lshl_add_u32 {v(t2)}, {v(t0)}, 4, {v(t2)}")
    S(f"v_lshlrev_b32 {v(t2)}, 4, {v(t2)}")
    S(f"v_and_b32 {v(t3)}, 1, {v(c_)}")
    S(f"v_lshl_add_u32 {v(t2)}, {v(t3)}, 3, {v(t2)}")
    S(f"s_lshl_b32 {s(sT0)}, {s(sMb)}, 13")
    S(f"v_add_u32 {v(bAA[0])}, {s(sT0)}, {v(t2)}")
    S(f"v_xor_b32 {v(bAA[1])}, 64, {v(bAA[0])}")
    S(f"v_lshlrev_b32 {v(t2)}, 7, {v(t1)}")
    S(f"v_lshrrev_b32 {v(t3)}, 1, {v(r_)}")
    S(f"v_xor_b32 {v(t3)}, {s(sNb)}, {v(t3)}")
    S(f"v_lshl_add_u32 {v(t2)}, {v(t3)}, 6, {v(t2)}")
    S(f"v_lshl_add_u32 {v(t2)}, {v(g1)}, 5, {v(t2)}")
    S(f"v_lshl_add_u32 {v(t2)}, {v(c_)}, 3, {v(t2)}")
    S(f"v_add_u32 {v(bBz)}, 16384, {v(t2)}")
    S(f"v_and_b32 {v(t0)}, 31, {v(vLane)}")
    S(f"s_lshl_b32 {s(sT0)}, {s(sNb)}, 5")
    S(f"v_add_u32 {v(t0)}, {s(sT0)}, {v(t0)}")
    S(f"v_bfe_u32 {v(t1)}, {v(t0)}, 1, 3")
    S(f"v_xor_b32 {v(t1)}, {v(t1)}, {v(kh)}")
    S(f"v_lshlrev_b32 {v(t0)}, 7, {v(t0)}")
    S(f"v_add_u32 {v(t0)}, 16384, {v(t0)}")
    for kp in range(4):
        S(f"v_xor_b32 {v(t2)}, {2*kp}, {v(t1)}")
        S(f"v_lshl_add_u32 {v(bBy[kp])}, {v(t2)}, 4, {v(t0)}")
    S(f"s_mov_b32 {s(sL2E)}, {L2E}")

    def set_addr(st):
        slot = (st % 4) * SLOT
        L = [f"v_add_u32 {v(cAA[0])}, {slot}, {v(bAA[0])}",
             f"v_add_u32 {v(cAA[1])}, {slot}, {v(bAA[1])}"]
        if st < NZ:
            L.append(f"v_add_u32 {v(cBz)}, {slot}, {v(bBz)}")
        else:
            a2 = A2_OFF + ((st - NZ) & 1) * 16384
            L += [f"v_add_u32 {v(cA2[0])}, {a2}, {v(bAA[0])}",
                  f"v_add_u32 {v(cA2[1])}, {a2}, {v(bAA[1])}"]
            L += [f"v_add_u32 {v(cBy[kp])}, {slot}, {v(bBy[kp])}" for kp in range(4)]
        return L

    def reads(st, u, buf):
        L = [f"ds_read_b64_tr_b16 {v(FA[buf],2)}, {v(cAA[0])} offset:{u*1024}",
             f"ds_read_b64_tr_b16 {v(FA[buf]+2,2)}, {v(cAA[1])} offset:{u*1024}"]
        if st < NZ:
            L += [f"ds_read_b64_tr_b16 {v(FB[buf],2)}, {v(cBz)} offset:{u*2048}",
                  f"ds_read_b64_tr_b16 {v(FB[buf]+2,2)}, {v(cBz)} offset:{u*2048+512}"]
        else:
            cbp, reim, kap = u >> 2, (u >> 1) & 1, u & 1
            L += [f"ds_read_b128 {v(FB[buf],4)}, {v(cBy[2*cbp+kap])} offset:{reim*8192}",
                  f"ds_read_b64_tr_b16 {v(FA2[buf],2)}, {v(cA2[0])} offset:{u*1024}",
                  f"ds_read_b64_tr_b16 {v(FA2[buf]+2,2)}, {v(cA2[1])} offset:{u*1024}"]
        return L

    def skip_work():
        L = [f"v_lshlrev_b32 {v(vD)}, 16, {v(vD)}"]
        for i in range(16):
            a, b = i >> 2, i & 3
            m = vMR + 8 * a + 2 * b
            x, k = vXf + i, vSk + i
            L += [f"v_lshlrev_b32 {v(x)}, 16, {v(x)}",
                  f"v_sub_f32 {v(k)}, {v(x)}, {v(m)}",
                  f"v_cvt_pk_bf16_f32 {v(k)}, {v(k)}, {v(k)}",
                  f"v_and_b32 {v(k)}, 0xffff0000, {v(k)}",
                  f"v_mul_f32 {v(k)}, {v(k)}, {v(m+1)}",
                  f"v_cvt_pk_bf16_f32 {v(k)}, {v(k)}, {v(k)}",
                  f"v_and_b32 {v(k)}, 0xffff0000, {v(k)}",
                  f"v_mul_f32 {v(k)}, {v(k)}, {v(vD)}",
                  f"v_cvt_pk_bf16_f32 {v(k)}, {v(k)}, {v(k)}",
                  f"v_and_b32 {v(k)}, 0xffff0000, {v(k)}"]
        return L

    def gate_work():
        L = []
        for i in range(0, 16, 2):
            z0, z1, e0, e1 = vMR + 0, vMR + 1, vMR + 2, vMR + 3
            o = 4 * ((i >> 1) & 3)
            z0, z1, e0, e1 = z0 + o, z1 + o, e0 + o, e1 + o
            L += [f"v_cvt_pk_bf16_f32 {v(e0)}, {v(accZ+i)}, {v(accZ+i+1)}",
                  f"v_lshlrev_b32 {v(z0)}, 16, {v(e0)}",
                  f"v_and_b32 {v(z1)}, 0xffff0000, {v(e0)}",
                  f"v_mul_f32 {v(e0)}, {s(sL2E)}, {v(z0)}",
                  f"v_mul_f32 {v(e1)}, {s(sL2E)}, {v(z1)}",
                  f"v_exp_f32 {v(e0)}, -{v(e0)}",
                  f"v_exp_f32 {v(e1)}, -{v(e1)}",
                  f"v_add_f32 {v(e0)}, 1.0, {v(e0)}",
                  f"v_add_f32 {v(e1)}, 1.0, {v(e1)}",
                  f"v_rcp_f32 {v(e0)}, {v(e0)}",
                  f"v_rcp_f32 {v(e1)}, {v(e1)}",
                  f"v_mul_f32 {v(z0)}, {v(z0)}, {v(e0)}",
                  f"v_mul_f32 {v(z1)}, {v(z1)}, {v(e1)}",
                  f"v_cvt_pk_bf16_f32 {v(e0)}, {v(z0)}, {v(z1)}",
                  f"v_lshlrev_b32 {v(vG+i)}, 16, {v(e0)}",
                  f"v_and_b32 {v(vG+i+1)}, 0xffff0000, {v(e0)}"]
        return L

    sk = skip_work()
    gw = gate_work()
    extra = {st: [] for st in range(NST)}
    n = len(sk) // 4 + 1
    for j, st in enumerate((4, 5, 6, 7)):
        extra[st] = sk[j * n:(j + 1) * n]
    n = len(gw) // 4
    for j, st in enumerate((12, 13, 14, 15)):
        extra[st] = gw[j * n:(j + 1) * n]

    S.wait_vm_tag(("st", 0))
    S.raw("s_barrier")
    emit_list(S, set_addr(0))
    emit_list(S, reads(0, 0, 0))
    buf = 0
    first = {"z": True, "y": True}
    for st in range(NST):
        nu = units_of(st)
        ex = extra[st]
        per = (len(ex) + nu - 2) // (nu - 1) if ex else 0
        for u in range(nu):
            fill = []
            if u == nu - 1:
                if st + 1 < NST:
                    S.wait_lg(0)
                    S.wait_vm_tag(("st", st + 1))
                    S.raw("s_barrier")
                    fill += set_addr(st + 1) + reads(st + 1, 0, buf ^ 1) + dma_list(st + 4)
            else:
                fill += reads(st, u + 1, buf ^ 1) + ex[u * per:(u + 1) * per]
            if st < NZ:
                c = "0" if first["z"] else v(accZ, 16)
                first["z"] = False
                main = [f"v_mfma_f32_32x32x16_bf16 {v(accZ,16)}, {v(FA[buf],4)}, {v(FB[buf],4)}, {c}"]
            else:
                c = "0" if first["y"] else v(accY, 16)
                first["y"] = False
                main = [f"v_mfma_f32_32x32x16_bf16 {v(accY,16)}, {v(FA[buf],4)}, {v(FB[buf],4)}, {c}",
                        f"v_mfma_f32_32x32x16_bf16 {v(accY,16)}, {v(FA2[buf],4)}, {v(FB[buf],4)}, {v(accY,16)}"]
            emit_list(S, interleave(main, fill), ("st", st + 4))
            buf ^= 1
    if stamp:
        S(f"s_memrealtime {s(sTime+4,2)}")
    for i in range(16):
        S(f"v_add_f32 {v(vSk+i)}, {v(accY+i)}, {v(vSk+i)}")
        S(f"v_fma_f32 {v(vXf+i)}, {v(vSk+i)}, {v(vG+i)}, {v(vXf+i)}")
        a, b = i >> 2, i & 3
        S(f"buffer_store_dword {v(vXf+i)}, {v(vOo)}, {s(sO,4)}, {s(sRow + 2*a + (b>>1))} offen offset:{(b&1)*2048}")
    finish(S)

    S.label(f"{name}_prod")
    S.vm, S.lg = list(common_state[0]), list(common_state[1])
    S.pos += 100
    A = Alloc(common_end, 256)
    vW = A()
    raw = [A(4), A(4)]
    lam = [A(2), A(2)]
    pw_ = [[A(2), A(2)], [A(2), A(2)]]
    l64 = [A(2), A(2)]
    Hh = [[A(2), A(2)], [A(2), A(2)]]
    tmp = [A(8), A(8)]
    OUT = [A(64), A(64)]
    E = [OUT[0] + 0, OUT[1] + 0]
    E = [OUT[0] + 32, OUT[1] + 32]
    nprod = A.n
    S(f"s_mov_b32 {s(sL2E)}, {L2E}")
    S(f"s_mov_b32 {s(sL2Elo)}, {L2E_LO}")
    S(f"s_mov_b32 {s(sLN2)}, {LN2}")
    S(f"s_mov_b32 {s(sI2P)}, {INV2PI}")
    S(f"s_lshl_b32 {s(sT0)}, {s(sPw)}, 6")
    S(f"v_add_u32 {v(t0)}, {s(sT0)}, {v(vLane)}")
    S(f"v_lshlrev_b32 {v(t1)}, 1, {v(t0)}")
    for q in range(2):
        S(f"global_load_ushort {v(raw[q])}, {v(t1)}, {s(sPTR+2,2)} offset:{512*q}")
        S(f"global_load_ushort {v(raw[q]+1)}, {v(t1)}, {s(sPTR+4,2)} offset:{512*q}")
        S(f"global_load_ushort {v(raw[q]+2)}, {v(t1)}, {s(sPTR+14,2)} offset:{512*q}")
    S(f"v_lshlrev_b32 {v(t1)}, 3, {v(t0)}")
    for j in range(1, 16):
        S(f"s_sub_u32 {s(sT0)}, {s(sRb)}, {j}")
        S(f"s_lshl_b32 {s(sT1)}, {s(sT0)}, 12")
        S(f"s_add_u32 {s(sT1)}, {s(sT1)}, {EC_OFF}")
        S(f"s_cmp_ge_u32 {s(sRb)}, {j}")
        S(f"s_cselect_b32 {s(sT1)}, {s(sT1)}, 0x40000000")
        for q in range(2):
            S(f"buffer_load_dwordx2 {v(E[q]+2*(j-1),2)}, {v(t1)}, {s(sH,4)}, {s(sT1)} offen offset:{2048*q}")
    S(f"v_lshrrev_b32 {v(t0)}, 5, {v(vLane)}")
    S(f"v_bfe_u32 {v(t1)}, {v(vLane)}, 4, 1")
    S(f"v_lshl_add_u32 {v(t0)}, {v(t0)}, 2, {v(t1)}")
    S(f"v_lshlrev_b32 {v(t0)}, 10, {v(t0)}")
    S(f"v_and_b32 {v(t1)}, 15, {v(vLane)}")
    S(f"v_lshl_add_u32 {v(t0)}, {v(t1)}, 4, {v(t0)}")
    S(f"v_add_u32 {v(vW)}, {A2_OFF}, {v(t0)}")
    vWq = [vT + 8 + i for i in range(4)]
    for tq in range(4):
        S(f"v_xor_b32 {v(vWq[tq])}, {64*tq}, {v(vW)}")

    class Rec:
        def __init__(self):
            self.L = []

        def __call__(self, t, tag=None):
            self.L.append(t)
    W = [Rec(), Rec()]
    for q in range(2):
        R = W[q]
        emit_lambda(R, raw[q], raw[q] + 1, raw[q] + 2, lam[q], None, tmp[q], (sL2E, sL2Elo, sLN2, sI2P))
        cur = lam[q]
        for k in range(7):
            nxt = l64[q] if k == 5 else pw_[q][k & 1]
            cmul(R, nxt, nxt + 1, cur, cur + 1, cur, cur + 1)
            cur = nxt
        l128 = cur
        h = E[q] + 2 * 14
        for j in range(14, 0, -1):
            nxt = Hh[q][j & 1]
            e = E[q] + 2 * (j - 1)
            cfma(R, nxt, nxt + 1, l128, l128 + 1, h, h + 1, e, e + 1)
            h = nxt
        o = Hh[q][0] if h == Hh[q][1] else Hh[q][1]
        cmul(R, o, o + 1, h, h + 1, l64[q], l64[q] + 1)
        R(f"v_cndmask_b32 {v(h)}, {v(h)}, {v(o)}, {s(sRow,2)}")
        R(f"v_cndmask_b32 {v(h+1)}, {v(h+1)}, {v(o+1)}, {s(sRow,2)}")
        c = [tmp[q], tmp[q] + 2]
        tt = tmp[q] + 4
        prev = h
        for t in range(64):
            cur = c[t & 1]
            R(f"v_pk_mul_f32 {v(tt,2)}, {v(prev,2)}, {v(lam[q],2)} op_sel:[0,0] op_sel_hi:[1,0]")
            R(f"v_pk_fma_f32 {v(cur,2)}, {v(prev,2)}, {v(lam[q],2)}, {v(tt,2)} op_sel:[1,1,0] op_sel_hi:[0,1,1] neg_lo:[0,1,0] neg_hi:[0,0,0]")
            if t & 1:
                R(f"v_cvt_pk_bf16_f32 {v(OUT[q] + (t>>1))}, {v(c[0])}, {v(c[1])}")
                R(f"v_cvt_pk_bf16_f32 {v(OUT[q] + 32 + (t>>1))}, {v(c[0]+1)}, {v(c[1]+1)}")
            prev = cur
    work = []
    for a, b in zip(W[0].L, W[1].L):
        work += [a, b]
    S(f"s_and_b32 {s(sT0)}, {s(sR2)}, 1")
    S(f"s_cmp_eq_u32 {s(sT0)}, 1")
    S(f"s_cselect_b64 {s(sRow,2)}, -1, 0")
    w0, nwork_st = 3, 7
    per = (len(work) + nwork_st - 1) // nwork_st
    S.wait_vm_tag(("st", 0))
    S.raw("s_barrier")
    for st in range(NST - 1):
        if w0 <= st < w0 + nwork_st:
            emit_list(S, work[(st - w0) * per:(st - w0 + 1) * per])
        sig = st + 1 - NZ
        if 0 <= sig < 8:
            q = sig >> 2
            lbl = f"{name}_w{sig}"
            S(f"s_cmp_eq_u32 {s(sPw)}, {sig & 3}")
            S.raw(f"s_cbranch_scc0 {lbl}")
            p0 = S.pos
            for reim in range(2):
                for tb2 in range(2):
                    for tq in range(4):
                        src = OUT[q] + 32 * reim + 16 * tb2 + 4 * tq
                        off = (sig & 1) * 16384 + tb2 * 8192 + reim * 2048 + tq * 256
                        S(f"ds_write_b128 {v(vWq[tq])}, {v(src,4)} offset:{off}")
            S.wait_lg(0)
            S.pos = p0
            S.label(lbl)
        S.wait_vm_tag(("st", st + 1))
        S.raw("s_barrier")
        emit_list(S, dma_list(st + 4), ("st", st + 4))
    if stamp:
        S(f"s_memrealtime {s(sTime+4,2)}")
    finish(S)
    S.label(f"{name}_end")
    S.raw("s_endpgm")
    return S, max(ncons, nprod)
```

```python
import sys
from k1 import gen_k1, kernel_desc
from k2 import gen_k2
stamp = "stamp" in sys.argv
outp = [a for a in sys.argv[1:] if a.endswith(".s")]
outp = outp[0] if outp else "full_test.s"
ref = open("recurrent_scan__ssm_conv_s5__glu_gated_reglu__prompt.s.ref").read()
hdr = [l for l in ref.split("\n") if l.startswith(";") and "@launch" not in l and "Override launch" not in l and "grid=ceil" not in l]
S1, n1 = gen_k1("k1_kernel", stamp=stamp)
S2, n2 = gen_k2("k2_kernel", stamp=stamp)
txt = "\n".join(hdr) + """
; @launch kernel=k1_kernel grid=(256,1,1) block=(512,1,1) lds=163840
; @launch kernel=k2_kernel grid=(256,1,1) block=(512,1,1) lds=163840
.amdgcn_target "amdgcn-amd-amdhsa--gfx950"
.text
.globl k1_kernel
.p2align 8
.type k1_kernel,@function
""" + S1.text() + """
.globl k2_kernel
.p2align 8
.type k2_kernel,@function
""" + S2.text() + '.section .rodata,"a"\n' + kernel_desc("k1_kernel", n1) + kernel_desc("k2_kernel", n2)
open(outp, "w").write(txt)
print("k1 vgprs", n1, "instrs", S1.nins, " k2 vgprs", n2, "instrs", S2.nins, "bytes", len(txt))
```

```python
import re

_REG_RE = re.compile(r"\b([vas])(\d+)\b|\b([vas])\[(\d+):(\d+)\]|\b(vcc|exec|m0|scc)\b")

TRANS = ("v_exp_f32", "v_log_f32", "v_rcp_f32", "v_rsq_f32", "v_sqrt_f32", "v_sin_f32", "v_cos_f32")


def regs_of(op):
    out = []
    for m in _REG_RE.finditer(op):
        if m.group(1):
            out.append((m.group(1), int(m.group(2))))
        elif m.group(3):
            for i in range(int(m.group(4)), int(m.group(5)) + 1):
                out.append((m.group(3), i))
        else:
            out.append((m.group(6), 0))
    return out


def split_ops(s):
    ops, depth, cur = [], 0, ""
    for ch in s:
        if ch in "[(":
            depth += 1
        if ch in "])":
            depth -= 1
        if ch == "," and depth == 0:
            ops.append(cur.strip())
            cur = ""
        else:
            cur += ch
    if cur.strip():
        ops.append(cur.strip())
    return ops


class Ins:
    __slots__ = ("text", "mn", "kind", "wr", "rd", "srcc", "srcab", "passes", "lds_dma")


def parse(text):
    t = text.split(";")[0].strip()
    sp = t.split(None, 1)
    mn = sp[0]
    rest = sp[1] if len(sp) > 1 else ""
    ops = split_ops(rest)
    I = Ins()
    I.text, I.mn, I.wr, I.rd, I.srcc, I.srcab, I.passes, I.lds_dma = text, mn, [], [], [], [], 0, False
    clean = []
    for o in ops:
        o2 = re.split(r"\s+(?:op_sel|op_sel_hi|neg_lo|neg_hi|offset|offset0|offset1|offen|idxen|sc0|sc1|nt|lds|clamp|mul|div|row_|quad_perm|bank_mask|bound_ctrl|cbsz|abid|blgp|off\b)", o)[0]
        clean.append(o2)
    ops = clean
    R = [regs_of(o) for o in ops]
    if mn.startswith("v_mfma"):
        I.kind = "mfma"
        I.wr = R[0]
        I.srcab = R[1] + R[2]
        I.srcc = R[3]
        I.rd = I.srcab + I.srcc
        I.passes = 8 if "32x32x16" in mn else 4
    elif mn.startswith("v_cmp"):
        I.kind = "valu"
        I.wr = R[0]
        I.rd = sum(R[1:], [])
    elif mn.startswith("v_readfirstlane") or mn.startswith("v_readlane"):
        I.kind = "valu"
        I.wr = R[0]
        I.rd = sum(R[1:], [])
    elif mn.startswith("v_permlane"):
        I.kind = "valu"
        I.wr = R[0] + R[1]
        I.rd = R[0] + R[1]
    elif mn.startswith("v_"):
        I.kind = "valu"
        I.wr = R[0]
        I.rd = sum(R[1:], [])
        if mn.startswith(("v_fmac", "v_dot2c", "v_pk_fmac")):
            I.rd = I.rd + R[0]
        if mn.startswith("v_cndmask") and len(ops) == 3:
            I.rd = I.rd + [("vcc", 0)]
        if "_co_" in mn:
            I.wr = R[0] + R[1]
            I.rd = sum(R[2:], [])
    elif mn.startswith("ds_read") or mn.startswith("ds_bpermute") or mn.startswith("ds_swizzle"):
        I.kind = "ds"
        I.wr = R[0]
        I.rd = sum(R[1:], [])
    elif mn.startswith("ds_write") or mn.startswith("ds_add"):
        I.kind = "ds"
        I.rd = sum(R, [])
    elif mn.startswith(("buffer_load", "global_load")):
        I.kind = "vmem"
        if re.search(r"\blds\b", t) or "_lds_" in mn:
            I.lds_dma = True
            I.rd = sum(R, []) + [("m0", 0)]
        else:
            I.wr = R[0]
            I.rd = sum(R[1:], [])
            if "d16" in mn:
                I.rd = I.rd + R[0]
    elif mn.startswith(("buffer_store", "global_store", "buffer_atomic", "global_atomic")):
        I.kind = "vmem"
        I.rd = sum(R, [])
    elif mn.startswith(("buffer_inv", "buffer_wbl2")):
        I.kind = "vmem"
    elif mn.startswith(("s_load", "s_memtime", "s_memrealtime", "s_buffer_load")):
        I.kind = "smem"
        I.wr = R[0]
        I.rd = sum(R[1:], [])
    elif mn.startswith(("s_cmp", "s_bitcmp")):
        I.kind = "salu"
        I.rd = sum(R, [])
        I.wr = [("scc", 0)]
    elif mn.startswith(("s_waitcnt", "s_barrier", "s_nop", "s_setprio", "s_sleep", "s_endpgm", "s_branch", "s_cbranch")):
        I.kind = "ctl"
    elif mn.startswith("s_"):
        I.kind = "salu"
        I.wr = R[0] if R else []
        I.rd = sum(R[1:], [])
    else:
        raise ValueError("unknown instruction: " + text)
    return I


class Stream:
    def __init__(self):
        self.lines = []
        self.pos = 0
        self.lastw = {}
        self.mfma_c_read = {}
        self.store_rd = {}
        self.vm = []
        self.lg = []
        self.nins = 0
        self.last_mfma = None

    def raw(self, text, states=1):
        self.lines.append("    " + text)
        self.pos += states
        self.nins += 1

    def label(self, name):
        self.lines.append(name + ":")

    def comment(self, c):
        self.lines.append("    ; " + c)

    def nop(self, n):
        while n > 0:
            k = min(n, 16)
            self.raw("s_nop %d" % (k - 1), states=k)
            n -= k

    def _emit_wait(self, vm=None, lg=None):
        parts = []
        if vm is not None:
            vm = min(vm, 63)
            parts.append("vmcnt(%d)" % vm)
            self.vm = self.vm[len(self.vm) - vm:] if vm else []
        if lg is not None:
            lg = min(lg, 15)
            parts.append("lgkmcnt(%d)" % lg)
            self.lg = self.lg[len(self.lg) - lg:] if lg else []
        if parts:
            self.raw("s_waitcnt " + " ".join(parts))

    def wait_vm_tag(self, tag):
        idx = [i for i, (t, _) in enumerate(self.vm) if t == tag]
        if idx:
            self._emit_wait(vm=len(self.vm) - 1 - idx[-1])

    def wait_vm(self, n=0):
        if len(self.vm) > n:
            self._emit_wait(vm=n)

    def wait_lg(self, n=0):
        if len(self.lg) > n:
            self._emit_wait(lg=n)

    def wait_all(self):
        self._emit_wait(vm=0 if self.vm else None, lg=0 if self.lg else None)

    def force_wait(self, vm=None, lg=None):
        self._emit_wait(vm=vm, lg=lg)

    def __call__(self, text, tag=None):
        for ln in text.strip().split("\n"):
            ln = ln.strip()
            if ln:
                self.emit(ln, tag)

    def emit(self, text, tag=None):
        I = parse(text)
        touched = set(I.rd) | set(I.wr)
        nvm = nlg = None
        for i, (_, d) in enumerate(self.vm):
            if d & touched:
                nvm = len(self.vm) - 1 - i
        for i, (_, d) in enumerate(self.lg):
            if d & touched:
                nlg = len(self.lg) - 1 - i
        if nvm is not None or nlg is not None:
            self._emit_wait(nvm, nlg)
        need = 0

        def req(p, n):
            nonlocal need
            need = max(need, n - (self.pos - p - 1))
        for r in I.rd:
            w = self.lastw.get(r)
            if not w:
                continue
            p, kind, info = w
            if kind == "valu":
                if r[0] in "va":
                    if I.kind == "mfma":
                        req(p, 2)
                    if I.mn.startswith(("v_readfirstlane", "v_readlane")):
                        req(p, 1)
                    if I.mn.startswith("v_permlane") or "dpp" in text or "row_" in text:
                        req(p, 2)
                    if info == "trans" and I.kind == "valu" and not I.mn.startswith(TRANS):
                        req(p, 1)
                    if info == "trans" and I.kind != "valu":
                        req(p, 1)
                    if info and info.startswith("dot"):
                        if I.mn == info[4:] and r in (regs_of_last(I)):
                            pass
                        else:
                            req(p, 3)
                else:
                    if I.kind in ("valu", "mfma"):
                        req(p, 2)
                        if I.mn.startswith(("v_readlane", "v_writelane")):
                            req(p, 4)
                    if I.kind == "vmem":
                        req(p, 5)
                    if I.kind in ("salu", "ctl", "smem"):
                        req(p, 1)
            elif kind == "mfma":
                n_other = {8: 12, 4: 8}[info[0]]
                if I.kind == "mfma":
                    if r in I.srcab:
                        req(p, n_other)
                    if r in I.srcc:
                        if tuple(I.srcc) == info[1] and I.passes == info[0]:
                            pass
                        else:
                            req(p, {8: 10, 4: 6}[info[0]])
                else:
                    req(p, n_other)
            elif kind == "salu":
                if r == ("m0", 0) and I.lds_dma:
                    req(p, 1)
        for r in I.wr:
            w = self.lastw.get(r)
            if w:
                p, kind, info = w
                if kind == "mfma":
                    if I.kind == "mfma" and tuple(I.wr) == info[1] and tuple(I.srcc) == info[1]:
                        pass
                    else:
                        req(p, {8: 12, 4: 8}[info[0]])
                if kind == "valu" and info and info.startswith("dot") and I.mn != info[4:]:
                    req(p, 3)
            c = self.mfma_c_read.get(r)
            if c and I.kind != "mfma":
                req(c[0], {8: 7, 4: 3}[c[1]])
            s = self.store_rd.get(r)
            if s is not None:
                req(s, 2)
        if I.kind in ("ds", "vmem") and I.wr and self.last_mfma is not None:
            p_, ab = self.last_mfma
            if set(I.wr) & ab and self.pos - p_ < 24:
                raise RuntimeError("load overwrites operands of the latest MFMA: " + text)
        if need > 0:
            self.nop(need)
        p = self.pos
        self.raw(text)
        info = None
        if I.kind == "valu":
            if I.mn.startswith(TRANS):
                info = "trans"
            elif I.mn.startswith("v_dot"):
                info = "dot:" + I.mn
        if I.kind == "mfma":
            info = (I.passes, tuple(I.wr))
            self.last_mfma = (p, set(I.srcab))
            for r in I.srcc:
                self.mfma_c_read[r] = (p, I.passes)
        for r in I.wr:
            self.lastw[r] = (p, I.kind, info)
        if I.kind == "vmem":
            self.vm.append((tag, set(I.wr)))
            if "store" in I.mn and ("x4" in I.mn or "x3" in I.mn):
                for r in I.rd:
                    if r[0] in "va":
                        self.store_rd[r] = p
        if I.kind == "ds":
            self.lg.append((tag, set(I.wr)))

    def text(self):
        return "\n".join(self.lines) + "\n"

    def snapshot(self):
        return ([(t, frozenset(d)) for t, d in self.vm], [(t, frozenset(d)) for t, d in self.lg])


def regs_of_last(I):
    if I.mn.startswith("v_dot2c"):
        return I.wr
    ops = split_ops(I.text.split(";")[0].strip().split(None, 1)[1])
    return regs_of(ops[-1])


def v(a, n=1):
    return "v%d" % a if n == 1 else "v[%d:%d]" % (a, a + n - 1)


def s(a, n=1):
    return "s%d" % a if n == 1 else "s[%d:%d]" % (a, a + n - 1)


class Alloc:
    def __init__(self, start, limit):
        self.n = start
        self.limit = limit

    def __call__(self, n=1, align=None):
        al = align or (4 if n >= 4 else (2 if n >= 2 else 1))
        self.n = (self.n + al - 1) // al * al
        r = self.n
        self.n += n
        assert self.n <= self.limit, "register overflow %d" % self.n
        return r
```

```python
from asmfw import Stream, Alloc, v, s
from k1 import (L2E, L2E_LO, LN2, INV2PI, emit_lambda, emit_bf16r, cmul, cfma, pk, interleave)

NKU = 150
RS_OFF = 0xA00000
CP_OFF = 0xA10000
EG_OFF = 0xA90000
F1_OFF = 0xAB0000
F2_OFF = 0xAB8000
WS_BYTES = 0xAC0000
OOB = 0x40000000

SLOT = 49152
SCR = 3 * SLOT
CS_OFF, MR_OFF, SEG_OFF = SCR, SCR + 8192, SCR + 10240
NZ, NST = 22, 38
BOFF = [2 * SLOT + 8192 * i for i in range(6)] + [8192 * i for i in range(6)] + [SCR, SCR + 8192]
AOFF = [SLOT + 8192 * i for i in range(6)]
NB, NA = len(BOFF), len(AOFF)
SC = "sc0 sc1"


class Rec:
    def __init__(self):
        self.L = []

    def __call__(self, t, tag=None):
        self.L.append(t)


def gen(name, stamp=False, opt=()):
    S = Stream()
    sPTR = 16
    sWG = 32
    sP3 = 36
    sDW = 40
    sDk = 44
    sN = 46
    sX, sS_, sG, sW, sWd = 48, 52, 56, 60, 64
    sCr, sCi = 52, 56
    sO = 52
    sWave, sTw, sGrp, sRb, sCb, sR2, sC2 = 68, 69, 70, 71, 72, 73, 74
    sMX, sMS, sMG = 75, 76, 77
    sT0, sT1, sT2, sT3 = 78, 79, 80, 81
    sOnes = 82
    sStG, sStS = 83, 85
    sL2E, sL2Elo, sLN2, sI2P = 86, 87, 88, 89
    sAz, sAy, sMA = 90, 91, 92
    sBad = 4
    sRow = 8
    sTime0 = 98
    sDbg = 6
    A = Alloc(1, 256)
    vLane, vKh, vStamp, vZero = A(), A(), A(), A()
    vT = A(16)
    vBz = [A(), A()]
    common_end = A.n
    vX0, vX1, vS_, vG = A(), A(), A(), A()
    vAX = [A() for _ in range(4)]
    vAS = [A() for _ in range(4)]
    vAG = A()
    vSt0, vSt1 = A(), A()
    vCS = A(4)
    vLam, vCoef, vL16, vL128, vCin = A(2), A(2), A(2), A(2), A(2)
    vP = A(16)
    vGr = A(20)
    acc = [A(16) for _ in range(4)]
    FX = [A(4) for _ in range(4)]
    FW = [[A(4) for _ in range(4)] for _ in range(4)]
    nv1 = A.n
    Fbase = FX[0]
    vM, vCp, vR = vGr, Fbase + 16, Fbase + 48
    vOut, vTmp = Fbase, Fbase + 16
    t0, t1, t2, t3 = vT, vT + 1, vT + 2, vT + 3

    def tick(S, idx):
        if not stamp:
            return
        S.raw('s_memtime s[94:95]')
        S.raw('s_waitcnt lgkmcnt(0)')
        S.lg = []
        S.raw('s_sub_u32 s94, s94, s96')
        S.raw(f'v_writelane_b32 {v(vStamp)}, s94, {idx}')

    def spin(S, lbl):
        S.raw("s_add_u32 s3, s3, 1")
        S.raw(f"s_cmp_gt_u32 s3, {1 << 17}")
        S.raw(f"s_cbranch_scc1 {lbl}_ok")

    def srd(S, d, p, n):
        S(f"s_mov_b32 {s(d)}, {s(p)}")
        S(f"s_mov_b32 {s(d+1)}, {s(p+1)}")
        S(f"s_mov_b32 {s(d+2)}, {n}")
        S(f"s_mov_b32 {s(d+3)}, 0x20000")

    def finish(S):
        if stamp:
            S.raw("s_waitcnt vmcnt(0)")
            tick(S, 63)
            S.raw("s_memrealtime s[94:95]")
            S.raw("s_waitcnt lgkmcnt(0)")
            S.raw(f"v_writelane_b32 {v(vStamp)}, s94, 62")
            S.raw(f"v_writelane_b32 {v(vStamp)}, {s(sTime0)}, 61")
            S(f"s_lshl_b32 {s(sT0)}, s2, 3")
            S(f"s_add_u32 {s(sT0)}, {s(sT0)}, {s(sWave)}")
            S(f"s_lshl_b32 {s(sT0)}, {s(sT0)}, 8")
            S(f"v_lshl_add_u32 {v(vT+4)}, {v(vLane)}, 2, {s(sT0)}")
            S(f"global_store_dword {v(vT+4)}, {v(vStamp)}, {s(sDbg,2)}")
        S.raw("s_endpgm")

    S.label(name)
    S("s_cmp_ge_u32 s2, 256")
    S.raw(f"s_cbranch_scc1 {name}_end")
    S(f"s_memrealtime {s(sTime0,2)}")
    if stamp:
        S("s_memtime s[96:97]")
    S(f"s_load_dwordx16 {s(sPTR,16)}, s[0:1], 0")
    S(f"s_load_dwordx4 {s(sWG,4)}, s[0:1], 80")
    S(f"s_load_dwordx4 {s(sP3,4)}, s[0:1], 96")
    S(f"s_load_dwordx4 {s(sDW,4)}, s[0:1], 112")
    S(f"s_load_dwordx2 {s(sDk,2)}, s[0:1], 64")
    if stamp:
        S(f"s_load_dwordx2 {s(sDbg,2)}, s[0:1], 72")
    S(f"v_and_b32 {v(vLane)}, 63, v0")
    S(f"v_lshrrev_b32 {v(vT)}, 6, v0")
    S(f"v_mov_b32 {v(vZero)}, 0")
    S("s_mov_b32 s3, 0")
    S(f"v_readfirstlane_b32 {s(sWave)}, {v(vT)}")
    S(f"v_lshrrev_b32 {v(vKh)}, 5, {v(vLane)}")
    S(f"s_and_b32 {s(sT0)}, s2, 7")
    S(f"s_lshr_b32 {s(sT1)}, s2, 3")
    S(f"s_and_b32 {s(sRb)}, {s(sT0)}, 1")
    S(f"s_lshl_b32 {s(sRb)}, {s(sRb)}, 3")
    S(f"s_and_b32 {s(sT2)}, {s(sT1)}, 7")
    S(f"s_add_u32 {s(sRb)}, {s(sRb)}, {s(sT2)}")
    S(f"s_lshr_b32 {s(sCb)}, {s(sT0)}, 1")
    S(f"s_lshl_b32 {s(sCb)}, {s(sCb)}, 2")
    S(f"s_lshr_b32 {s(sT3)}, {s(sT1)}, 3")
    S(f"s_add_u32 {s(sCb)}, {s(sCb)}, {s(sT3)}")
    S(f"s_and_b32 {s(sR2)}, {s(sT0)}, 3")
    S(f"s_lshl_b32 {s(sR2)}, {s(sR2)}, 3")
    S(f"s_add_u32 {s(sR2)}, {s(sR2)}, {s(sT2)}")
    S(f"s_and_b32 {s(sC2)}, {s(sT0)}, 4")
    S(f"s_add_u32 {s(sC2)}, {s(sC2)}, {s(sT3)}")
    S(f"s_and_b32 {s(sTw)}, {s(sWave)}, 3")
    S(f"s_lshr_b32 {s(sGrp)}, {s(sWave)}, 2")
    S(f"v_lshrrev_b32 {v(t0)}, 3, {v(vLane)}")
    S(f"v_and_b32 {v(t1)}, 7, {v(vLane)}")
    S(f"v_lshrrev_b32 {v(t2)}, 1, {v(t0)}")
    S(f"v_xor_b32 {v(t3)}, {v(t1)}, {v(t2)}")
    S(f"s_lshl_b32 {s(sT0)}, {s(sRb)}, 7")
    S(f"s_lshl_b32 {s(sT1)}, {s(sWave)}, 4")
    S(f"s_add_u32 {s(sT0)}, {s(sT0)}, {s(sT1)}")
    S(f"v_add_u32 {v(vX0)}, {s(sT0)}, {v(t0)}")
    S(f"v_lshlrev_b32 {v(vX0)}, 10, {v(vX0)}")
    S(f"v_add_u32 {v(vX1)}, {8192 - 1024}, {v(vX0)}")
    S(f"v_lshl_add_u32 {v(vX0)}, {v(t3)}, 4, {v(vX0)}")
    S(f"v_xor_b32 {v(t2)}, 4, {v(t3)}")
    S(f"v_lshl_add_u32 {v(vX1)}, {v(t2)}, 4, {v(vX1)}")
    S(f"s_and_b32 {s(sT0)}, {s(sWave)}, 1")
    S(f"s_lshl_b32 {s(sT0)}, {s(sT0)}, 2")
    S(f"v_xor_b32 {v(t2)}, {s(sT0)}, {v(t3)}")
    S(f"s_lshl_b32 {s(sT0)}, {s(sCb)}, 5")
    S(f"s_lshl_b32 {s(sT1)}, {s(sTw)}, 3")
    S(f"s_add_u32 {s(sT0)}, {s(sT0)}, {s(sT1)}")
    S(f"v_add_u32 {v(vS_)}, {s(sT0)}, {v(t0)}")
    S(f"v_lshlrev_b32 {v(vS_)}, 10, {v(vS_)}")
    S(f"v_lshl_add_u32 {v(vS_)}, {v(t2)}, 4, {v(vS_)}")
    S(f"v_lshrrev_b32 {v(t0)}, 2, {v(vLane)}")
    S(f"s_lshl_b32 {s(sT0)}, {s(sTw)}, 4")
    S(f"v_add_u32 {v(t0)}, {s(sT0)}, {v(t0)}")
    S(f"v_mul_u32_u24 {v(vG)}, 2752, {v(t0)}")
    S(f"v_and_b32 {v(t1)}, 3, {v(vLane)}")
    S(f"v_lshl_add_u32 {v(vG)}, {v(t1)}, 4, {v(vG)}")
    S(f"s_mul_i32 {s(sT0)}, {s(sCb)}, 192")
    S(f"v_add_u32 {v(vG)}, {s(sT0)}, {v(vG)}")
    S(f"s_lshl_b32 {s(sMX)}, {s(sWave)}, 11")
    S(f"s_lshl_b32 {s(sMS)}, {s(sWave)}, 10")
    S(f"s_add_u32 {s(sMS)}, {s(sMS)}, 16384")
    S(f"s_mul_i32 {s(sMG)}, {s(sWave)}, 3072")
    S(f"s_add_u32 {s(sMG)}, {s(sMG)}, 24576")
    lr, li, ld = vGr + 8, vGr + 9, vGr + 10
    vPo = vT + 4
    S(f"v_and_b32 {v(vPo)}, 31, {v(vLane)}")
    S(f"s_lshl_b32 {s(sT0)}, {s(sCb)}, 5")
    S(f"v_add_lshl_u32 {v(vPo)}, {v(vPo)}, {s(sT0)}, 1")
    vL16B = vT + 5
    S(f"v_lshlrev_b32 {v(vL16B)}, 4, {v(vLane)}")
    S.raw("s_waitcnt lgkmcnt(0)")
    tick(S, 40)
    srd(S, sX, sPTR, 0x200000)
    S(f"s_cmp_eq_u32 {s(sGrp)}, 0")
    S(f"s_cselect_b32 {s(sS_)}, {s(sPTR+6)}, {s(sPTR+8)}")
    S(f"s_cselect_b32 {s(sS_+1)}, {s(sPTR+7)}, {s(sPTR+9)}")
    S(f"s_mov_b32 {s(sS_+2)}, 0x80000")
    S(f"s_mov_b32 {s(sS_+3)}, 0x20000")
    S(f"s_cselect_b32 {s(sG)}, {s(sWG)}, {s(sWG+2)}")
    S(f"s_cselect_b32 {s(sG+1)}, {s(sWG+1)}, {s(sWG+3)}")
    S(f"s_mov_b32 {s(sG+2)}, {512*2752}")
    S(f"s_mov_b32 {s(sG+3)}, 0x20000")
    S(f"s_or_b32 {s(sT0)}, s2, {s(sWave)}")
    S(f"s_cmp_lg_u32 {s(sT0)}, 0")
    S.raw(f"s_cbranch_scc1 {name}_nn")
    S(f"s_or_b32 {s(sT0)}, {s(sTime0)}, 1")
    S(f"v_mov_b32 {v(t0)}, {s(sT0)}")
    S(f"v_mov_b32 {v(t1)}, {s(sTime0+1)}")
    S.raw("s_mov_b64 exec, 1")
    S.raw(f"global_store_dwordx2 {v(vZero)}, {v(t0,2)}, {s(sDW,2)} {SC}")
    S.raw("s_mov_b64 exec, -1")
    S.label(f"{name}_nn")

    def dma_parts(c):
        slot = (c % 3) * SLOT
        return [[f"s_add_u32 m0, {s(sMX)}, {slot}",
                 f"s_movk_i32 {s(sT3)}, {128*c}",
                 f"buffer_load_dwordx4 {v(vX0)}, {s(sX,4)}, {s(sT3)} offen lds",
                 f"buffer_load_dwordx4 {v(vX1)}, {s(sX,4)}, {s(sT3)} offen offset:1024 lds"],
                [f"s_add_u32 m0, {s(sMS)}, {slot}",
                 f"s_movk_i32 {s(sT3)}, {128*c}",
                 f"buffer_load_dwordx4 {v(vS_)}, {s(sS_,4)}, {s(sT3)} offen lds"],
                [f"s_add_u32 m0, {s(sMG)}, {slot}",
                 f"s_mov_b32 {s(sT3)}, {c*64*2752}",
                 f"buffer_load_dwordx4 {v(vG)}, {s(sG,4)}, {s(sT3)} offen lds",
                 f"s_add_u32 m0, m0, {1024-64}",
                 f"buffer_load_dwordx4 {v(vG)}, {s(sG,4)}, {s(sT3)} offen offset:64 lds",
                 f"s_add_u32 m0, m0, {1024-64}",
                 f"buffer_load_dwordx4 {v(vG)}, {s(sG,4)}, {s(sT3)} offen offset:128 lds"]]

    def emit(S, L, tag=None):
        for ins in L:
            S(ins, tag=tag if ins.endswith("lds") else None)

    for part in dma_parts(0):
        emit(S, part, ("c", 0))
    srd(S, sW, sDW + 2, WS_BYTES)
    srd(S, sWd, sP3, 1376 * 1024)
    S.raw("s_barrier")
    S(f"s_lshl_b32 {s(sT0)}, {s(sRb)}, 7")
    S(f"s_lshl_b32 {s(sT1)}, {s(sCb)}, 3")
    S(f"s_add_u32 {s(sT0)}, {s(sT0)}, {s(sT1)}")
    S(f"s_add_u32 {s(sT0)}, {s(sT0)}, {s(sWave)}")
    sMyRow = 93
    S(f"s_mov_b32 {s(sMyRow)}, {s(sT0)}")
    S(f"s_lshl_b32 {s(sT0)}, {s(sT0)}, 10")
    vRowD = vGr
    S(f"buffer_load_dwordx4 {v(vRowD,4)}, {v(vL16B)}, {s(sX,4)}, {s(sT0)} offen")
    S(f"global_load_ushort {v(lr)}, {v(vPo)}, {s(sPTR+2,2)}")
    S(f"global_load_ushort {v(li)}, {v(vPo)}, {s(sPTR+4,2)}")
    S(f"global_load_ushort {v(ld)}, {v(vPo)}, {s(sPTR+14,2)}")
    S(f"s_cmp_lt_u32 {s(sTw)}, 2")
    S.raw(f"s_cbranch_scc0 {name}_cs_s")
    keep = list(S.vm)
    S(f"s_lshl_b32 {s(sT0)}, {s(sGrp)}, 1")
    S(f"s_add_u32 {s(sT0)}, {s(sT0)}, {s(sTw)}")
    S(f"s_mul_i32 {s(sT0)}, {s(sT0)}, 3072")
    S(f"s_add_u32 m0, {s(sT0)}, {SCR}")
    S(f"s_mul_i32 {s(sT3)}, {s(sRb)}, {32*2752}")
    S(f"buffer_load_dwordx4 {v(vG)}, {s(sG,4)}, {s(sT3)} offen lds")
    S(f"s_add_u32 m0, m0, {1024-64}")
    S(f"buffer_load_dwordx4 {v(vG)}, {s(sG,4)}, {s(sT3)} offen offset:64 lds")
    S(f"s_add_u32 m0, m0, {1024-64}")
    S(f"buffer_load_dwordx4 {v(vG)}, {s(sG,4)}, {s(sT3)} offen offset:128 lds")
    S.raw(f"s_branch {name}_cs_e")
    S.label(f"{name}_cs_s")
    S(f"v_lshrrev_b32 {v(t0)}, 2, {v(vLane)}")
    S(f"s_lshl_b32 {s(sT0)}, {s(sCb)}, 5")
    S(f"s_lshl_b32 {s(sT1)}, {s(sTw)}, 4")
    S(f"s_add_u32 {s(sT0)}, {s(sT0)}, {s(sT1)}")
    S(f"s_sub_u32 {s(sT0)}, {s(sT0)}, 32")
    S(f"v_add_u32 {v(t0)}, {s(sT0)}, {v(t0)}")
    S(f"v_lshlrev_b32 {v(t0)}, 10, {v(t0)}")
    S(f"v_lshrrev_b32 {v(t1)}, 4, {v(vLane)}")
    S(f"v_xor_b32 {v(t1)}, {v(t1)}, {v(vLane)}")
    S(f"v_and_b32 {v(t1)}, 3, {v(t1)}")
    S(f"v_lshl_add_u32 {v(t0)}, {v(t1)}, 4, {v(t0)}")
    S(f"s_lshl_b32 {s(sT0)}, {s(sGrp)}, 1")
    S(f"s_add_u32 {s(sT0)}, {s(sT0)}, {s(sTw)}")
    S(f"s_lshl_b32 {s(sT0)}, {s(sT0)}, 10")
    S(f"s_add_u32 m0, {s(sT0)}, {SCR + 12288 - 2048}")
    S(f"s_lshl_b32 {s(sT3)}, {s(sRb)}, 6")
    S(f"buffer_load_dwordx4 {v(t0)}, {s(sS_,4)}, {s(sT3)} offen lds")
    S.label(f"{name}_cs_e")
    S.vm = keep + [("cs", set())]
    vNon = vGr + 12
    S(f"global_load_dwordx2 {v(vNon,2)}, {v(vZero)}, {s(sDW,2)} {SC}")
    for part in dma_parts(1):
        emit(S, part, ("c", 1))
    emit(S, dma_parts(2)[0], ("c", 2))
    tick(S, 41)

    S(f"v_and_b32 {v(t0)}, 1, {v(vLane)}")
    S(f"v_lshlrev_b32 {v(t0)}, 3, {v(t0)}")
    S(f"v_bfe_u32 {v(t1)}, {v(vLane)}, 1, 1")
    S(f"v_add_u32 {v(t0)}, {v(t0)}, {v(t1)}")
    S(f"v_bfe_u32 {v(t1)}, {v(vLane)}, 3, 2")
    S(f"v_lshl_add_u32 {v(t0)}, {v(t1)}, 1, {v(t0)}")
    S(f"v_bfe_u32 {v(t1)}, {v(vLane)}, 2, 1")
    S(f"v_lshl_add_u32 {v(t0)}, {v(t1)}, 4, {v(t0)}")
    S(f"s_lshl_b32 {s(sT0)}, {s(sTw)}, 5")
    S(f"v_add_u32 {v(t0)}, {s(sT0)}, {v(t0)}")
    S(f"v_bfe_u32 {v(t1)}, {v(t0)}, 1, 3")
    S(f"v_xor_b32 {v(t1)}, {v(t1)}, {v(vKh)}")
    S(f"v_lshlrev_b32 {v(t0)}, 7, {v(t0)}")
    for ks in range(4):
        S(f"v_xor_b32 {v(t3)}, {2*ks}, {v(t1)}")
        S(f"v_lshl_add_u32 {v(vAX[ks])}, {v(t3)}, 4, {v(t0)}")
    S(f"v_and_b32 {v(t0)}, 31, {v(vLane)}")
    S(f"v_bfe_u32 {v(t1)}, {v(t0)}, 1, 3")
    S(f"v_xor_b32 {v(t1)}, {v(t1)}, {v(vKh)}")
    S(f"v_lshlrev_b32 {v(t0)}, 7, {v(t0)}")
    S(f"v_add_u32 {v(t0)}, 16384, {v(t0)}")
    for ks in range(4):
        S(f"v_xor_b32 {v(t3)}, {2*ks}, {v(t1)}")
        S(f"v_lshl_add_u32 {v(vAS[ks])}, {v(t3)}, 4, {v(t0)}")
    vTr = vT + 6
    S(f"v_bfe_u32 {v(t0)}, {v(vLane)}, 2, 2")
    S(f"v_lshl_add_u32 {v(t0)}, {v(vKh)}, 3, {v(t0)}")
    S(f"v_lshlrev_b32 {v(t0)}, 6, {v(t0)}")
    S(f"v_bfe_u32 {v(t1)}, {v(vLane)}, 4, 1")
    S(f"v_lshl_add_u32 {v(t0)}, {v(t1)}, 5, {v(t0)}")
    S(f"v_and_b32 {v(t1)}, 3, {v(vLane)}")
    S(f"v_lshl_add_u32 {v(vTr)}, {v(t1)}, 3, {v(t0)}")
    S(f"v_add_u32 {v(vAG)}, 24576, {v(vTr)}")
    S(f"v_and_b32 {v(t0)}, 15, {v(vLane)}")
    S(f"v_bfe_u32 {v(t1)}, {v(vLane)}, 4, 1")
    S(f"v_lshlrev_b32 {v(t1)}, 10, {v(t1)}")
    S(f"v_lshlrev_b32 {v(t3)}, 3, {v(vKh)}")
    S(f"v_xor_b32 {v(t3)}, {v(t3)}, {v(t0)}")
    S(f"v_lshl_add_u32 {v(t1)}, {v(vKh)}, 9, {v(t1)}")
    S(f"v_lshl_add_u32 {v(vSt0)}, {v(t3)}, 4, {v(t1)}")
    S(f"v_xor_b32 {v(t3)}, 4, {v(t3)}")
    S(f"v_lshl_add_u32 {v(vSt1)}, {v(t3)}, 4, {v(t1)}")
    S(f"v_add_u32 {v(vSt1)}, 256, {v(vSt1)}")
    S(f"s_lshl_b32 {s(sT0)}, {s(sRb)}, 2")
    S(f"s_add_u32 {s(sT0)}, {s(sT0)}, {s(sTw)}")
    S(f"s_mul_i32 {s(sT0)}, {s(sT0)}, {NKU}")
    S(f"s_lshl_b32 {s(sT1)}, {s(sCb)}, 2")
    S(f"s_add_u32 {s(sT1)}, {s(sT1)}, 86")
    S(f"s_add_u32 {s(sStS)}, {s(sT0)}, {s(sT1)}")
    S(f"s_lshl_b32 {s(sStS)}, {s(sStS)}, 10")
    S(f"s_mul_i32 {s(sT1)}, {s(sCb)}, 6")
    for j in range(2):
        S(f"s_cmp_eq_u32 {s(sGrp)}, 0")
        S(f"s_cselect_b32 {s(sT2)}, 4, {2*j}")
        S(f"s_add_u32 {s(sT2)}, {s(sT2)}, {s(sT1)}")
        S(f"s_add_u32 {s(sStG+j)}, {s(sT0)}, {s(sT2)}")
        S(f"s_lshl_b32 {s(sStG+j)}, {s(sStG+j)}, 10")
        S(f"s_cmp_ge_u32 {s(sT2)}, 86")
        S(f"s_cselect_b32 {s(sStG+j)}, {OOB}, {s(sStG+j)}")
    S(f"s_mov_b32 {s(sOnes)}, 0x3f803f80")
    S(f"v_lshrrev_b32 {v(t0)}, 3, {v(vLane)}")
    S(f"v_and_b32 {v(t1)}, 7, {v(vLane)}")
    S(f"v_bfe_u32 {v(t2)}, {v(vLane)}, 4, 1")
    S(f"v_lshlrev_b32 {v(t2)}, 2, {v(t2)}")
    S(f"v_xor_b32 {v(t2)}, {v(t2)}, {v(t1)}")
    S(f"s_lshl_b32 {s(sT0)}, {s(sTw)}, 4")
    S(f"v_add_u32 {v(t3)}, {s(sT0)}, {v(t0)}")
    S(f"v_lshlrev_b32 {v(t3)}, 10, {v(t3)}")
    S(f"v_lshl_add_u32 {v(t3)}, {v(t2)}, 4, {v(t3)}")
    S(f"s_lshl_b32 {s(sT0)}, {s(sC2)}, 7")
    S(f"v_add_u32 {v(vBz[0])}, {s(sT0)}, {v(t3)}")
    S(f"v_add_u32 {v(vBz[1])}, {8192-1024}, {v(vBz[0])}")
    S(f"s_lshl_b32 {s(sMA)}, {s(sTw)}, 11")
    S(f"s_mov_b32 {s(sL2E)}, {L2E}")
    S(f"s_cmp_eq_u32 {s(sGrp)}, 0")
    S.raw(f"s_cbranch_scc0 {name}_g1")
    common_state = (list(S.vm), list(S.lg))

    def issueBz(st):
        return [f"s_add_u32 m0, {s(sMA)}, {BOFF[st % NB]}",
                f"s_mov_b32 {s(sT3)}, {st*65536}",
                f"buffer_load_dwordx4 {v(vBz[0])}, {s(sWd,4)}, {s(sT3)} offen lds",
                f"buffer_load_dwordx4 {v(vBz[1])}, {s(sWd,4)}, {s(sT3)} offen offset:1024 lds"]

    def reads(grp, ks):
        L = [f"ds_read_b128 {v(FX[ks],4)}, {v(vAX[ks])}"]

        def tr(dst, mat, i):
            base = ((mat * 4 + ks) * 3 + i) * 1024
            return [f"ds_read_b64_tr_b16 {v(dst,2)}, {v(vAG)} offset:{base}",
                    f"ds_read_b64_tr_b16 {v(dst+2,2)}, {v(vAG)} offset:{base+256}"]
        if grp == 0:
            L.append(f"ds_read_b128 {v(FW[ks][0],4)}, {v(vAS[ks])}")
            L.append(f"ds_read_b128 {v(FW[ks][1],4)}, {v(vAS[ks])} offset:4096")
            L += tr(FW[ks][2], 0, 2) + tr(FW[ks][3], 1, 2)
        else:
            L += tr(FW[ks][0], 0, 0) + tr(FW[ks][1], 1, 0) + tr(FW[ks][2], 0, 1) + tr(FW[ks][3], 1, 1)
        return L

    def wave_reduce(S, r, sdst):
        S(f"v_add_f32_dpp {v(r)}, {v(r)}, {v(r)} row_shr:1 row_mask:0xf bank_mask:0xf bound_ctrl:0")
        S(f"v_add_f32_dpp {v(r)}, {v(r)}, {v(r)} row_shr:2 row_mask:0xf bank_mask:0xf bound_ctrl:0")
        S(f"v_add_f32_dpp {v(r)}, {v(r)}, {v(r)} row_shr:4 row_mask:0xf bank_mask:0xf bound_ctrl:0")
        S(f"v_add_f32_dpp {v(r)}, {v(r)}, {v(r)} row_shr:8 row_mask:0xf bank_mask:0xf bound_ctrl:0")
        S(f"v_add_f32_dpp {v(r)}, {v(r)}, {v(r)} row_bcast:15 row_mask:0xa bank_mask:0xf")
        S(f"v_add_f32_dpp {v(r)}, {v(r)}, {v(r)} row_bcast:31 row_mask:0xc bank_mask:0xf")
        S(f"v_readlane_b32 {s(sdst)}, {v(r)}, 63")

    def get_nonce(S, lbl):
        S(f"v_readfirstlane_b32 {s(sN)}, {v(vNon)}")
        S(f"v_readfirstlane_b32 {s(sN+1)}, {v(vNon+1)}")
        S(f"s_cmp_lg_u32 {s(sN)}, 0")
        S.raw(f"s_cbranch_scc1 {lbl}_ok")
        S.label(f"{lbl}_retry")
        spin(S, lbl)
        S.raw(f"global_load_dwordx2 {v(vNon,2)}, {v(vZero)}, {s(sDW,2)} {SC}")
        S.raw("s_waitcnt vmcnt(0)")
        S.raw(f"v_readfirstlane_b32 {s(sN)}, {v(vNon)}")
        S.raw(f"v_readfirstlane_b32 {s(sN+1)}, {v(vNon+1)}")
        S.raw("s_nop 1")
        S.raw(f"s_cmp_lg_u32 {s(sN)}, 0")
        S.raw(f"s_cbranch_scc0 {lbl}_retry")
        S.label(f"{lbl}_ok")
        S.raw("s_nop 4")

    def row_stats(S):
        u = vT + 8
        a = vT + 7
        for i in range(4):
            S(f"v_lshlrev_b32 {v(u+2*i)}, 16, {v(vRowD+i)}")
            S(f"v_and_b32 {v(u+2*i+1)}, 0xffff0000, {v(vRowD+i)}")
        S(f"v_add_f32 {v(a)}, {v(u)}, {v(u+1)}")
        S(f"v_add_f32 {v(t0)}, {v(u+2)}, {v(u+3)}")
        S(f"v_add_f32 {v(t1)}, {v(u+4)}, {v(u+5)}")
        S(f"v_add_f32 {v(t2)}, {v(u+6)}, {v(u+7)}")
        S(f"v_add_f32 {v(a)}, {v(a)}, {v(t0)}")
        S(f"v_add_f32 {v(t1)}, {v(t1)}, {v(t2)}")
        S(f"v_add_f32 {v(a)}, {v(a)}, {v(t1)}")
        S(f"v_mul_f32 {v(a)}, {1.0/512}, {v(a)}")
        wave_reduce(S, a, sT0)
        for i in range(8):
            S(f"v_subrev_f32 {v(u+i)}, {s(sT0)}, {v(u+i)}")
        S(f"v_mul_f32 {v(a)}, {v(u)}, {v(u)}")
        S(f"v_mul_f32 {v(t0)}, {v(u+1)}, {v(u+1)}")
        for i in range(2, 8, 2):
            S(f"v_fma_f32 {v(a)}, {v(u+i)}, {v(u+i)}, {v(a)}")
            S(f"v_fma_f32 {v(t0)}, {v(u+i+1)}, {v(u+i+1)}, {v(t0)}")
        S(f"v_add_f32 {v(a)}, {v(a)}, {v(t0)}")
        S(f"v_mul_f32 {v(a)}, {1.0/512}, {v(a)}")
        wave_reduce(S, a, sT1)
        g = vRowD
        S(f"v_mov_b32 {v(g)}, {s(sT0)}")
        S(f"v_mov_b32 {v(a)}, {s(sT1)}")
        emit_bf16r(S, g, g)
        emit_bf16r(S, a, a)
        S(f"v_add_f32 {v(a)}, 0x3727c5ac, {v(a)}")
        emit_bf16r(S, a, a)
        S(f"v_sqrt_f32 {v(a)}, {v(a)}")
        emit_bf16r(S, a, a)
        S(f"v_rcp_f32 {v(g+1)}, {v(a)}")
        S(f"v_mov_b32 {v(g+2)}, {s(sN)}")
        S(f"v_mov_b32 {v(g+3)}, {s(sN+1)}")
        S(f"s_lshl_b32 {s(sT0)}, {s(sMyRow)}, 4")
        S(f"s_add_u32 {s(sT0)}, {s(sT0)}, {RS_OFF}")
        S.raw("s_mov_b64 exec, 1")
        S(f"buffer_store_dwordx4 {v(g,4)}, {v(vZero)}, {s(sW,4)}, {s(sT0)} offen {SC}")
        S.raw("s_mov_b64 exec, -1")

    def colsum_publish(S, lbl):
        f = vP
        g = vGr + 4
        S(f"s_cmp_eq_u32 {s(sTw)}, 0")
        S.raw(f"s_cbranch_scc1 {lbl}_s")
        keep = list(S.lg)
        S(f"s_add_u32 {s(sT0)}, {s(sTw)}, 1")
        S(f"s_cmp_ge_u32 {s(sT0)}, 3")
        S(f"s_cselect_b32 {s(sT1)}, 3, 0")
        S(f"s_sub_u32 {s(sT0)}, {s(sT0)}, {s(sT1)}")
        S(f"s_lshl_b32 {s(sT0)}, {s(sT0)}, 10")
        S(f"s_add_u32 {s(sT0)}, {s(sT0)}, {SCR}")
        S(f"v_add_u32 {v(t0)}, {s(sT0)}, {v(vTr)}")
        for mat in range(2):
            for ks in range(2):
                base = (mat * 2 + ks) * 3072
                d = f + 8 * mat + 4 * ks
                S(f"ds_read_b64_tr_b16 {v(d,2)}, {v(t0)} offset:{base}")
                S(f"ds_read_b64_tr_b16 {v(d+2,2)}, {v(t0)} offset:{base+256}")
        S.raw(f"s_branch {lbl}_e")
        S.label(f"{lbl}_s")
        S(f"v_and_b32 {v(t0)}, 31, {v(vLane)}")
        S(f"v_bfe_u32 {v(t1)}, {v(vLane)}, 2, 2")
        S(f"v_xor_b32 {v(t1)}, {v(t1)}, {v(vKh)}")
        S(f"v_lshlrev_b32 {v(t0)}, 6, {v(t0)}")
        S(f"v_add_u32 {v(t0)}, {SCR + 12288}, {v(t0)}")
        S(f"v_lshl_add_u32 {v(t2)}, {v(t1)}, 4, {v(t0)}")
        S(f"v_xor_b32 {v(t3)}, 32, {v(t2)}")
        for mat in range(2):
            S(f"ds_read_b128 {v(f+8*mat,4)}, {v(t2)} offset:{mat*2048}")
            S(f"ds_read_b128 {v(f+8*mat+4,4)}, {v(t3)} offset:{mat*2048}")
        S.label(f"{lbl}_e")
        S.raw("s_waitcnt lgkmcnt(0)")
        S.lg = []
        S(f"v_mov_b32 {v(g)}, 0")
        S(f"v_mov_b32 {v(g+1)}, 0")
        for i in range(8):
            S(f"v_dot2c_f32_bf16 {v(g)}, {s(sOnes)}, {v(f+i)}")
            S(f"v_dot2c_f32_bf16 {v(g+1)}, {s(sOnes)}, {v(f+8+i)}")
        S(f"v_mov_b32 {v(t0)}, {v(g)}")
        S(f"v_mov_b32 {v(t1)}, {v(g+1)}")
        S(f"v_permlane32_swap_b32 {v(g)}, {v(t0)}")
        S(f"v_permlane32_swap_b32 {v(g+1)}, {v(t1)}")
        S(f"v_add_f32 {v(g)}, {v(g)}, {v(t0)}")
        S(f"v_add_f32 {v(g+1)}, {v(g+1)}, {v(t1)}")
        S(f"v_mov_b32 {v(g+2)}, {s(sN)}")
        S(f"v_mov_b32 {v(g+3)}, {s(sN+1)}")
        S(f"s_lshl_b32 {s(sT0)}, {s(sCb)}, 4")
        S(f"s_add_u32 {s(sT0)}, {s(sT0)}, {s(sRb)}")
        S(f"s_lshl_b32 {s(sT0)}, {s(sT0)}, 2")
        S(f"s_add_u32 {s(sT0)}, {s(sT0)}, {s(sTw)}")
        S(f"s_lshl_b32 {s(sT0)}, {s(sT0)}, 9")
        S(f"s_add_u32 {s(sT0)}, {s(sT0)}, {CP_OFF}")
        S.raw("s_mov_b32 exec_hi, 0")
        S(f"buffer_store_dwordx4 {v(g,4)}, {v(vL16B)}, {s(sW,4)}, {s(sT0)} offen {SC}")
        S.raw("s_mov_b64 exec, -1")

    vGa, vGb = vT + 8, vT + 9
    sGa, sGb = 100, 101

    def gather_setup(grp):
        L = [f"v_and_b32 {v(vGa)}, 31, {v(vLane)}",
             f"v_lshlrev_b32 {v(vGa)}, 4, {v(vGa)}",
             f"v_lshl_add_u32 {v(vGb)}, {v(vKh)}, 12, {v(vGa)}",
             f"s_lshl_b32 {s(sGa)}, {s(sRb)}, 11",
             f"s_lshl_b32 {s(sT0)}, {s(sTw)}, 9",
             f"s_add_u32 {s(sGa)}, {s(sGa)}, {s(sT0)}",
             f"s_add_u32 {s(sGa)}, {s(sGa)}, {RS_OFF}",
             f"s_lshl_b32 {s(sGb)}, {s(sCb)}, 15",
             f"s_lshl_b32 {s(sT0)}, {s(sTw)}, 13",
             f"s_add_u32 {s(sGb)}, {s(sGb)}, {s(sT0)}",
             f"s_add_u32 {s(sGb)}, {s(sGb)}, {CP_OFF + grp*1024}"]
        return L

    def gather_loads():
        L = [f"buffer_load_dwordx4 {v(vGr,4)}, {v(vGa)}, {s(sW,4)}, {s(sGa)} offen {SC}"]
        for jj in range(2):
            for e in range(2):
                L.append(f"buffer_load_dwordx4 {v(vGr+4+8*jj+4*e,4)}, {v(vGb)}, {s(sW,4)}, {s(sGb)} offen offset:{jj*512 + e*2048} {SC}")
        return L

    def check_tags(S, regs, lbl, reload):
        def cmp(E):
            for i, r in enumerate(regs):
                E(f"v_cmp_ne_u64 vcc, {s(sN,2)}, {v(r,2)}")
                if i == 0:
                    E(f"s_mov_b64 {s(sBad,2)}, vcc")
                else:
                    E(f"s_or_b64 {s(sBad,2)}, {s(sBad,2)}, vcc")
            E(f"s_cmp_eq_u64 {s(sBad,2)}, 0")
        cmp(S)
        S.raw(f"s_cbranch_scc1 {lbl}_ok")
        S.label(f"{lbl}_retry")
        spin(S, lbl)
        S.raw("s_sleep 2")
        for ins in reload:
            S.raw(ins)
        S.raw("s_waitcnt vmcnt(0)")

        def E(t):
            S.raw(t)
            if t.startswith("v_cmp"):
                S.raw("s_nop 1")
        cmp(E)
        S.raw(f"s_cbranch_scc0 {lbl}_retry")
        S.label(f"{lbl}_ok")

    vCsRd, vMrRd = vT + 10, vT + 11

    def gather_finish(S, grp, lbl):
        check_tags(S, [vGr + 2 + 4 * i for i in range(5)], lbl, gather_loads())
        for jj in range(2):
            b = vGr + 4 + 8 * jj
            S(f"v_add_f32 {v(b)}, {v(b)}, {v(b+4)}")
            S(f"v_add_f32 {v(b+1)}, {v(b+1)}, {v(b+5)}")
        S(f"v_lshlrev_b32 {v(t0)}, 1, {v(vGa)}")
        S(f"v_add_u32 {v(vCsRd)}, {CS_OFF + grp*4096}, {v(t0)}")
        S(f"s_lshl_b32 {s(sT0)}, {s(sTw)}, 3")
        S(f"v_lshl_add_u32 {v(t0)}, {v(vKh)}, 2, {v(vCsRd)}")
        S(f"v_add_u32 {v(t0)}, {s(sT0)}, {v(t0)}")
        for jj in range(2):
            b = vGr + 4 + 8 * jj
            S(f"ds_write_b32 {v(t0)}, {v(b)} offset:{(2*jj)*1024}")
            S(f"ds_write_b32 {v(t0)}, {v(b+1)} offset:{(2*jj+1)*1024}")
        S(f"v_and_b32 {v(t1)}, 7, {v(vLane)}")
        S(f"v_bfe_u32 {v(t2)}, {v(vLane)}, 3, 1")
        S(f"v_lshl_add_u32 {v(t1)}, {v(t1)}, 1, {v(t2)}")
        S(f"v_bfe_u32 {v(t2)}, {v(vLane)}, 4, 1")
        S(f"v_lshl_add_u32 {v(t1)}, {v(t2)}, 4, {v(t1)}")
        S(f"s_lshl_b32 {s(sT0)}, {s(sWave)}, 8")
        S(f"s_add_u32 {s(sT0)}, {s(sT0)}, {MR_OFF}")
        S(f"v_lshl_add_u32 {v(t1)}, {v(t1)}, 2, {s(sT0)}")
        S(f"ds_write2_b32 {v(t1)}, {v(vGr)}, {v(vGr+1)} offset0:0 offset1:32")
        S(f"v_lshl_add_u32 {v(vMrRd)}, {v(vKh)}, 6, {s(sT0)}")

    def kloop(S, grp, work):
        nw = (len(work) + 11) // 12
        lbl = f"{name}_k{grp}"
        regs = vAX + (vAS if grp == 0 else []) + [vAG]
        S.wait_vm_tag(("c", 0))
        tick(S, 42)
        S.raw("s_barrier")
        tick(S, 43)
        emit(S, reads(grp, 0) + reads(grp, 1))
        first = True
        for c in range(8):
            for ks in range(4):
                pre, fill, dma, dtag = [], [], [], None
                if ks == 2 and c < 7:
                    if c == 6:
                        gather_finish(S, grp, f"{lbl}_gf")
                    S.wait_lg(0)
                    S.wait_vm_tag(("c", c + 1))
                    tick(S, 8 + c)
                    S.raw("s_barrier")
                    tick(S, c)
                    delta = SLOT if (c + 1) % 3 else -2 * SLOT
                    order = [vAX[0]] + ([vAS[0]] if grp == 0 else []) + [vAG] + [r for r in regs if r not in (vAX[0], vAS[0], vAG)]
                    upd = [f"v_add_u32 {v(r)}, {delta & 0xffffffff}, {v(r)}" for r in order]
                    nf = 3 if grp == 0 else 2
                    fill += upd[:nf] + reads(grp, 0) + upd[nf:]
                elif ks == 3 and c < 7:
                    fill += reads(grp, 1)
                elif ks < 2:
                    fill += reads(grp, ks + 2)
                if ks == 2:
                    tgt, part = c + 3, 0
                elif ks == 3:
                    tgt, part = c + 3, 1
                elif ks == 0:
                    tgt, part = c + 2, 2
                else:
                    tgt, part = None, None
                if c == 0 and ks == 1:
                    tgt, part = 2, 1
                if tgt is not None:
                    if tgt < 8:
                        dma, dtag = dma_parts(tgt)[part], ("c", tgt)
                    elif tgt < 10:
                        st = (tgt - 8) * 6 + 2 * part + grp
                        dma, dtag = issueBz(st), ("B", st)
                if 1 <= c <= 3:
                    k = (c - 1) * 4 + ks
                    fill += work[k * nw:(k + 1) * nw]
                if c == 7 and ks == 2:
                    fill += [f"ds_read_b128 {v(vM+4*j,4)}, {v(vMrRd)} offset:{16*j}" for j in range(4)]
                    for b in range(4):
                        fill += [f"ds_read_b128 {v(vCp+8*b,4)}, {v(vCsRd)} offset:{b*1024}",
                                 f"ds_read_b128 {v(vCp+8*b+4,4)}, {v(vCsRd)} offset:{b*1024+16}"]
                if c == 7 and ks == 3:
                    fill += [f"ds_read_b128 {v(vR+4*j,4)}, {v(vMrRd)} offset:{128+16*j}" for j in range(4)]
                if c == 5 and ks == 1:
                    fill += gather_setup(grp)
                if c == 5 and ks == 3:
                    dma = dma + gather_loads()
                cc = [("0" if first else v(acc[b], 16)) for b in range(4)]
                first = False
                main = [f"v_mfma_f32_32x32x16_bf16 {v(acc[b],16)}, {v(FX[ks],4)}, {v(FW[ks][b],4)}, {cc[b]}" for b in range(4)]
                nm = 0
                for ins in interleave(main, fill):
                    S(ins)
                    if ins.startswith("v_mfma"):
                        nm += 1
                        if nm == (2 if grp == 0 else 3):
                            emit(S, dma, dtag)
                if c == 0 and ks == 3:
                    get_nonce(S, f"{lbl}_non")
                    row_stats(S)
                    if grp == 1:
                        colsum_publish(S, f"{lbl}_cp")
        tick(S, 44)
        for b in (range(4) if grp == 1 else (2, 3, 0, 1)):
            c_ = vCp + 8 * b
            S(pk("add", c_, c_, c_ + 2))
            S(pk("add", c_ + 4, c_ + 4, c_ + 6))
            S(pk("add", c_, c_, c_ + 4))
            S(f"v_add_f32 {v(vCS+b)}, {v(c_)}, {v(c_+1)}")

    def pack_store(S, src, soff, imm, out, tag=None):
        for q in range(2):
            for jj in range(4):
                S(f"v_cvt_pk_bf16_f32 {v(out+4*q+jj)}, {v(src + 4*jj + q)}, {v(src + 4*jj + 2 + q)}")
            S(f"buffer_store_dwordx4 {v(out+4*q,4)}, {v(vSt1 if q else vSt0)}, {s(sW,4)}, {s(soff)} offen offset:{imm} {SC}", tag=tag)

    def glu_epilogue(S, G, U, cspair, soff, out, R2, tag):
        for j in range(8):
            S(pk("fma", G + 2 * j, vM + 2 * j, cspair, G + 2 * j, bsel=0, negb=True))
            S(pk("fma", U + 2 * j, vM + 2 * j, cspair, U + 2 * j, bsel=1, negb=True))
        for i in range(16):
            S(f"v_max_f32 {v(G+i)}, 0, {v(G+i)}")
        for j in range(8):
            S(pk("mul", U + 2 * j, U + 2 * j, R2 + 2 * j))
        for j in range(8):
            S(pk("mul", G + 2 * j, G + 2 * j, U + 2 * j))
        pack_store(S, G, soff, 0, out, tag)

    def set_flag(S, off_base, shift, add):
        S(f"s_lshl_b32 {s(sT0)}, {s(sRb)}, 2")
        S(f"s_add_u32 {s(sT0)}, {s(sT0)}, {s(sTw)}")
        S(f"s_lshl_b32 {s(sT0)}, {s(sT0)}, 4")
        S(f"s_add_u32 {s(sT0)}, {s(sT0)}, {s(sCb)}")
        S(f"s_lshl_b32 {s(sT0)}, {s(sT0)}, {shift}")
        S(f"s_add_u32 {s(sT0)}, {s(sT0)}, {off_base + add}")
        S(f"v_mov_b32 {v(t0)}, {s(sN)}")
        S(f"v_mov_b32 {v(t1)}, {s(sN+1)}")
        S.raw("s_mov_b64 exec, 1")
        S(f"buffer_store_dwordx2 {v(t0,2)}, {v(vZero)}, {s(sW,4)}, {s(sT0)} offen {SC}")
        S.raw("s_mov_b64 exec, -1")

    S(f"s_mov_b32 {s(sL2Elo)}, {L2E_LO}")
    S(f"s_mov_b32 {s(sLN2)}, {LN2}")
    S(f"s_mov_b32 {s(sI2P)}, {INV2PI}")
    R = Rec()
    emit_lambda(R, lr, li, ld, vLam, vCoef, vGr, (sL2E, sL2Elo, sLN2, sI2P))
    R(f"v_mov_b32 {v(vP)}, {v(vLam)}")
    R(f"v_mov_b32 {v(vP+1)}, {v(vLam+1)}")
    for j in range(1, 8):
        cmul(R, vP + 2 * j, vP + 2 * j + 1, vP + 2 * j - 2, vP + 2 * j - 1, vLam, vLam + 1)
    cmul(R, vL16, vL16 + 1, vP + 14, vP + 15, vP + 14, vP + 15)
    cmul(R, vGr + 14, vGr + 15, vL16, vL16 + 1, vL16, vL16 + 1)
    cmul(R, vGr + 16, vGr + 17, vGr + 14, vGr + 15, vGr + 14, vGr + 15)
    cmul(R, vL128, vL128 + 1, vGr + 16, vGr + 17, vGr + 16, vGr + 17)
    lam_work = R.L
    kloop(S, 0, lam_work)
    R2 = vTmp
    for j in range(8):
        S(pk("mul", R2 + 2 * j, vR + 2 * j, vR + 2 * j))
    glu_epilogue(S, acc[2], acc[3], vCS + 2, sStG + 1, vOut, R2, "hst")
    tick(S, 45)
    are, aim = acc[0], acc[1]
    for j in range(8):
        S(pk("fma", are + 2 * j, vM + 2 * j, vCS, are + 2 * j, bsel=0, negb=True))
        S(pk("fma", aim + 2 * j, vM + 2 * j, vCS, aim + 2 * j, bsel=1, negb=True))
    for j in range(8):
        S(pk("mul", are + 2 * j, are + 2 * j, vR + 2 * j))
        S(pk("mul", aim + 2 * j, aim + 2 * j, vR + 2 * j))
    for j in range(8):
        ta = vTmp + 16 + 4 * (j & 1)
        tb = ta + 2
        S(pk("mul", ta, are + 2 * j, vCoef, bsel=0))
        S(pk("mul", tb, are + 2 * j, vCoef, bsel=1))
        S(pk("fma", are + 2 * j, aim + 2 * j, vCoef, ta, bsel=1))
        S(pk("fma", aim + 2 * j, aim + 2 * j, vCoef, tb, bsel=0, negb=True))
    for j in range(1, 8):
        S(pk("fma", are + 2 * j, are + 2 * j - 2, vLam, are + 2 * j, bsel=0))
        S(pk("fma", aim + 2 * j, aim + 2 * j - 2, vLam, aim + 2 * j, bsel=0))
        S(pk("fma", are + 2 * j, aim + 2 * j - 2, vLam, are + 2 * j, bsel=1, negb=True))
        S(pk("fma", aim + 2 * j, are + 2 * j - 2, vLam, aim + 2 * j, bsel=1))
    e0 = vT + 12
    cfma(S, e0, e0 + 1, vP + 14, vP + 15, are + 14, aim + 14, are + 15, aim + 15)
    a0, a1, vSidx = vT + 8, vT + 9, vT + 10
    S(f"v_and_b32 {v(a0)}, 31, {v(vLane)}")
    S(f"v_lshlrev_b32 {v(a0)}, 6, {v(a0)}")
    S(f"v_add_u32 {v(a0)}, {SEG_OFF}, {v(a0)}")
    S(f"s_lshl_b32 {s(sT0)}, {s(sTw)}, 1")
    S(f"v_add_u32 {v(vSidx)}, {s(sT0)}, {v(vKh)}")
    S(f"v_lshl_add_u32 {v(a1)}, {v(vSidx)}, 3, {v(a0)}")
    S(f"ds_write_b64 {v(a1)}, {v(e0,2)}")
    S.wait_lg(0)
    tick(S, 46)
    S.raw("s_barrier")
    vSeg = Fbase + 64
    for j in range(4):
        S(f"ds_read_b128 {v(vSeg+4*j,4)}, {v(a0)} offset:{16*j}")
    pf = [vTmp, vTmp + 2]
    pw = [vTmp + 4, vTmp + 6]
    vLs = vCoef
    S(f"v_mov_b32 {v(vCin)}, 0")
    S(f"v_mov_b32 {v(vCin+1)}, 0")
    S(f"v_mov_b32 {v(vLs)}, 1.0")
    S(f"v_mov_b32 {v(vLs+1)}, 0")
    cur, curp = vSeg, vL16
    for j in range(1, 8):
        S(f"v_cmp_eq_u32 vcc, {j}, {v(vSidx)}")
        nxt = pf[j & 1] if j < 7 else vGr
        cfma(S, nxt, nxt + 1, vL16, vL16 + 1, cur, cur + 1, vSeg + 2 * j, vSeg + 2 * j + 1)
        S(f"v_cndmask_b32 {v(vCin)}, {v(vCin)}, {v(cur)}, vcc")
        S(f"v_cndmask_b32 {v(vCin+1)}, {v(vCin+1)}, {v(cur+1)}, vcc")
        S(f"v_cndmask_b32 {v(vLs)}, {v(vLs)}, {v(curp)}, vcc")
        S(f"v_cndmask_b32 {v(vLs+1)}, {v(vLs+1)}, {v(curp+1)}, vcc")
        if j < 7:
            np_ = pw[j & 1]
            cmul(S, np_, np_ + 1, curp, curp + 1, vL16, vL16 + 1)
            curp = np_
        cur = nxt
    S(f"v_mov_b32 {v(vGr+2)}, {s(sN)}")
    S(f"v_mov_b32 {v(vGr+3)}, {s(sN+1)}")
    S(f"s_lshl_b32 {s(sT0)}, {s(sCb)}, 4")
    S(f"s_add_u32 {s(sT0)}, {s(sT0)}, {s(sRb)}")
    S(f"s_lshl_b32 {s(sT0)}, {s(sT0)}, 9")
    sEo = sGa
    S(f"s_add_u32 {s(sEo)}, {s(sT0)}, {EG_OFF}")
    S(f"s_cmp_eq_u32 {s(sTw)}, 0")
    S(f"s_cselect_b32 {s(sT0)}, {s(sEo)}, {OOB}")
    S.raw("s_mov_b32 exec_hi, 0")
    S(f"buffer_store_dwordx4 {v(vGr,4)}, {v(vL16B)}, {s(sW,4)}, {s(sT0)} offen {SC}")
    S.raw("s_mov_b64 exec, -1")
    S.wait_vm_tag("hst")
    set_flag(S, F1_OFF, 4, 0)
    tick(S, 47)
    vBy = [vX0, vX1]
    vFl, vF2 = vS_, vG
    srd(S, sCr, sPTR + 10, 0x80000)
    srd(S, sCi, sPTR + 12, 0x80000)
    S(f"v_lshrrev_b32 {v(t0)}, 3, {v(vLane)}")
    S(f"v_and_b32 {v(t1)}, 7, {v(vLane)}")
    S(f"v_lshrrev_b32 {v(t2)}, 1, {v(t0)}")
    S(f"v_xor_b32 {v(t2)}, {v(t2)}, {v(t1)}")
    S(f"s_lshl_b32 {s(sT0)}, {s(sC2)}, 6")
    S(f"s_lshl_b32 {s(sT1)}, {s(sTw)}, 4")
    S(f"s_add_u32 {s(sT0)}, {s(sT0)}, {s(sT1)}")
    S(f"v_add_u32 {v(t3)}, {s(sT0)}, {v(t0)}")
    S(f"v_lshlrev_b32 {v(t3)}, 10, {v(t3)}")
    S(f"v_lshl_add_u32 {v(vBy[0])}, {v(t2)}, 4, {v(t3)}")
    S(f"v_xor_b32 {v(t2)}, 4, {v(t2)}")
    S(f"v_lshl_add_u32 {v(vBy[1])}, {v(t2)}, 4, {v(t3)}")
    S(f"v_add_u32 {v(vBy[1])}, {8192-1024}, {v(vBy[1])}")
    S(f"s_lshl_b32 {s(sT0)}, {s(sR2)}, 1")
    S(f"s_lshr_b32 {s(sT1)}, {s(sTw)}, 1")
    S(f"s_add_u32 {s(sT0)}, {s(sT0)}, {s(sT1)}")
    S(f"s_mul_i32 {s(sT0)}, {s(sT0)}, {NKU}")
    S(f"s_and_b32 {s(sT1)}, {s(sTw)}, 1")
    S(f"s_lshl_b32 {s(sT1)}, {s(sT1)}, 1")
    S(f"s_add_u32 {s(sAz)}, {s(sT0)}, {s(sT1)}")
    S(f"s_add_u32 {s(sAy)}, {s(sAz)}, {s(sT1)}")
    S(f"s_add_u32 {s(sAy)}, {s(sAy)}, 86")
    S(f"s_lshl_b32 {s(sAz)}, {s(sAz)}, 10")
    S(f"s_lshl_b32 {s(sAy)}, {s(sAy)}, 10")
    S(f"v_lshlrev_b32 {v(vFl)}, 3, {v(vLane)}")
    S(f"v_and_b32 {v(vF2)}, 0xff, {v(vFl)}")
    sF1, sF2 = sMX, sMS
    S(f"s_lshl_b32 {s(sF1)}, {s(sR2)}, 9")
    S(f"s_add_u32 {s(sF1)}, {s(sF1)}, {F1_OFF}")
    S(f"s_lshl_b32 {s(sF2)}, {s(sR2)}, 8")
    S(f"s_add_u32 {s(sF2)}, {s(sF2)}, {F2_OFF}")

    def issueA(st):
        L = [f"s_add_u32 m0, {s(sMA)}, {AOFF[st % NA]}"]
        if st < NZ:
            L.append(f"s_add_u32 {s(sT3)}, {s(sAz)}, {st*4096}")
        else:
            j = st - NZ
            L.append(f"s_add_u32 {s(sT3)}, {s(sAy)}, {(8*(j>>1) + 2*(j&1))*1024}")
        L += [f"buffer_load_dwordx4 {v(vL16B)}, {s(sW,4)}, {s(sT3)} offen {SC} lds",
              f"buffer_load_dwordx4 {v(vL16B)}, {s(sW,4)}, {s(sT3)} offen offset:1024 {SC} lds"]
        return L

    def issueB(st):
        if st < NZ:
            return issueBz(st)
        j = st - NZ
        return [f"s_add_u32 m0, {s(sMA)}, {BOFF[st % NB]}",
                f"s_movk_i32 {s(sT3)}, {(j>>1)*128}",
                f"buffer_load_dwordx4 {v(vBy[0])}, {s(sCi if j & 1 else sCr,4)}, {s(sT3)} offen lds",
                f"buffer_load_dwordx4 {v(vBy[1])}, {s(sCi if j & 1 else sCr,4)}, {s(sT3)} offen offset:1024 lds"]

    fl = vGr + 4
    f1load = [f"buffer_load_dwordx2 {v(fl,2)}, {v(vFl)}, {s(sW,4)}, {s(sF1)} offen {SC}"]
    f2load = [f"buffer_load_dwordx2 {v(fl,2)}, {v(vF2)}, {s(sW,4)}, {s(sF2)} offen {SC}"]
    emit(S, f1load)
    check_tags(S, [fl], f"{name}_f1", f1load)
    S.vm = []
    tick(S, 48)
    for st in range(NA):
        emit(S, issueA(st), ("A", st))
    EG = Fbase
    vEo = vAX[0]
    vEx = vAX[1]
    S(f"v_and_b32 {v(vEo)}, 31, {v(vLane)}")
    S(f"v_lshlrev_b32 {v(vEo)}, 4, {v(vEo)}")

    def eloads():
        return [f"buffer_load_dwordx4 {v(EG+4*i,4)}, {v(vAS[0] if False else EA[i])}, {s(sW,4)}, 0 offen {SC}" for i in range(8)]
    EA = [Fbase + 32 + i for i in range(8)]
    ET = [Fbase + 40 + 2 * i for i in range(8)]
    ew = []
    for i in range(8):
        ew += [f"v_add_u32 {v(t0)}, {1 + 2*i}, {v(vKh)}",
               f"v_lshlrev_b32 {v(t1)}, 9, {v(t0)}",
               f"v_sub_u32 {v(t1)}, {s(sEo)}, {v(t1)}",
               f"v_add_u32 {v(t1)}, {v(t1)}, {v(vEo)}",
               f"v_cmp_ge_u32 vcc, {s(sRb)}, {v(t0)}",
               f"v_mov_b32 {v(t2)}, {OOB}",
               f"v_cndmask_b32 {v(EA[i])}, {v(t2)}, {v(t1)}, vcc",
               f"v_mov_b32 {v(t2)}, {s(sN)}",
               f"v_mov_b32 {v(t3)}, {s(sN+1)}",
               f"v_cndmask_b32 {v(ET[i])}, 0, {v(t2)}, vcc",
               f"v_cndmask_b32 {v(ET[i]+1)}, 0, {v(t3)}, vcc"]
    emit(S, ew)

    def echeck(S, lbl):
        def cmp(E):
            for i in range(8):
                E(f"v_cmp_ne_u64 vcc, {v(ET[i],2)}, {v(EG+4*i+2,2)}")
                if i == 0:
                    E(f"s_mov_b64 {s(sBad,2)}, vcc")
                else:
                    E(f"s_or_b64 {s(sBad,2)}, {s(sBad,2)}, vcc")
            E(f"s_cmp_eq_u64 {s(sBad,2)}, 0")
        cmp(S)
        S.raw(f"s_cbranch_scc1 {lbl}_ok")
        S.label(f"{lbl}_retry")
        spin(S, lbl)
        S.raw("s_sleep 2")
        for ins in eloads():
            S.raw(ins)
        S.raw("s_waitcnt vmcnt(0)")

        def E(t):
            S.raw(t)
            if t.startswith("v_cmp"):
                S.raw("s_nop 1")
        cmp(E)
        S.raw(f"s_cbranch_scc0 {lbl}_retry")
        S.label(f"{lbl}_ok")

    def finalize():
        R = Rec()
        l256 = Fbase + 64
        cmul(R, l256, l256 + 1, vL128, vL128 + 1, vL128, vL128 + 1)
        hp = [Fbase + 66, Fbase + 68]
        h = EG + 28
        for i in range(6, -1, -1):
            nxt = hp[i & 1]
            cfma(R, nxt, nxt + 1, l256, l256 + 1, h, h + 1, EG + 4 * i, EG + 4 * i + 1)
            h = nxt
        o = hp[1] if h == hp[0] else hp[0]
        cmul(R, o, o + 1, h, h + 1, vL128, vL128 + 1)
        R(f"v_cmp_eq_u32 vcc, 1, {v(vKh)}")
        R(f"v_cndmask_b32 {v(h)}, {v(h)}, {v(o)}, vcc")
        R(f"v_cndmask_b32 {v(h+1)}, {v(h+1)}, {v(o+1)}, vcc")
        R(f"v_mov_b32 {v(o)}, {v(h)}")
        R(f"v_mov_b32 {v(o+1)}, {v(h+1)}")
        R(f"v_permlane32_swap_b32 {v(h)}, {v(o)}")
        R(f"v_permlane32_swap_b32 {v(h+1)}, {v(o+1)}")
        R(f"v_add_f32 {v(h)}, {v(h)}, {v(o)}")
        R(f"v_add_f32 {v(h+1)}, {v(h+1)}, {v(o+1)}")
        CR, CI = EG, EG + 2
        cfma(R, CR, CI, vLs, vLs + 1, h, h + 1, vCin, vCin + 1)
        cfma(R, CR + 1, CI + 1, vP + 14, vP + 15, CR, CI, are + 14, aim + 14)
        for j in range(8):
            R(pk("fma", are + 2 * j, CR, vP + 2 * j, are + 2 * j, bsel=0))
            R(pk("fma", aim + 2 * j, CI, vP + 2 * j, aim + 2 * j, bsel=0))
            R(pk("fma", are + 2 * j, CI, vP + 2 * j, are + 2 * j, bsel=1, negb=True))
            R(pk("fma", aim + 2 * j, CR, vP + 2 * j, aim + 2 * j, bsel=1))
        pack_store(R, are, sStS, 0, EG + 8)
        pack_store(R, aim, sStS, 2048, EG + 16)
        return R.L

    emit(S, eloads())
    fin = finalize()
    IV_ECHK, IV_FIN, IV_FLAG2, IV_F2L, IV_F2C = 3, (3, 4, 5, 6), 11, 13, 15
    nfin = (len(fin) + len(IV_FIN) - 1) // len(IV_FIN)
    nextA, nextB = NA, 12
    S.wait_vm_tag(("A", 0))
    S.raw("s_barrier")
    for st in range(NST - 1):
        if st >= 2 and nextA < NST and nextA - NA <= st - 2 and (nextA < NZ or st > IV_F2C or (st == IV_F2C and False)):
            emit(S, issueA(nextA), ("A", nextA))
            nextA += 1
            while nextA < NST and nextA - NA <= st - 2 and st > IV_F2C:
                emit(S, issueA(nextA), ("A", nextA))
                nextA += 1
        if nextB < NST and (nextB - NB <= st - 2) and st >= 1:
            emit(S, issueB(nextB), ("B", nextB))
            nextB += 1
        if st == IV_ECHK:
            echeck(S, f"{name}_ec")
        if st in IV_FIN:
            k = IV_FIN.index(st)
            for ins in fin[k * nfin:(k + 1) * nfin]:
                S(ins, tag="hst2" if "store" in ins else None)
        if st == IV_FLAG2:
            S.wait_vm_tag("hst2")
            set_flag(S, F2_OFF, 3, 0)
        if st == IV_F2L:
            emit(S, f2load)
        if st == IV_F2C:
            check_tags(S, [fl], f"{name}_f2", f2load)
        S.wait_vm_tag(("A", st + 1))
        S.wait_vm_tag(("B", st + 1))
        assert nextA > st + 1 and nextB > st + 1, (st, nextA, nextB)
        S.raw("s_barrier")
    finish(S)

    S.label(f"{name}_g1")
    S.vm, S.lg = list(common_state[0]), list(common_state[1])
    S.pos += 100
    kloop(S, 1, [])
    for j in range(8):
        S(pk("mul", vR + 2 * j, vR + 2 * j, vR + 2 * j))
    glu_epilogue(S, acc[0], acc[1], vCS, sStG, vOut, vR, "hst")
    glu_epilogue(S, acc[2], acc[3], vCS + 2, sStG + 1, vOut + 8, vR, "hst")
    tick(S, 45)
    A = Alloc(common_end, Fbase)
    bAA = [A(), A()]
    bBz = A()
    bBy = [A() for _ in range(4)]
    cAA = [A(), A()]
    cB = [A() for _ in range(4)]
    vOo, vD, xo, so, do = A(), A(), A(), A(), A()
    accZ, accY = A(16), A(16)
    vXf, vSk, vGg, vGt = A(16), A(16), A(16), A(16)
    FA = [[Fbase + 16 * b + 4 * u for u in range(4)] for b in range(2)]
    FB = [[Fbase + 32 + 16 * b + 4 * u for u in range(4)] for b in range(2)]
    vMR = vGg
    sMb, sNb = sT1, sT2
    S(f"s_lshr_b32 {s(sMb)}, {s(sTw)}, 1")
    S(f"s_and_b32 {s(sNb)}, {s(sTw)}, 1")
    g1, r_, c_ = vT + 8, vT + 9, vT + 10
    S(f"v_bfe_u32 {v(g1)}, {v(vLane)}, 4, 1")
    S(f"v_bfe_u32 {v(r_)}, {v(vLane)}, 2, 2")
    S(f"v_and_b32 {v(c_)}, 3, {v(vLane)}")
    S(f"v_and_b32 {v(t0)}, 31, {v(vLane)}")
    S(f"s_lshl_b32 {s(sT0)}, {s(sC2)}, 6")
    S(f"v_add_u32 {v(t0)}, {s(sT0)}, {v(t0)}")
    S(f"s_lshl_b32 {s(sT0)}, {s(sNb)}, 5")
    S(f"v_add_u32 {v(t0)}, {s(sT0)}, {v(t0)}")
    S(f"s_lshl_b32 {s(sT0)}, {s(sR2)}, 6")
    S(f"v_lshl_add_u32 {v(t1)}, {v(vKh)}, 2, {s(sT0)}")
    S(f"s_lshl_b32 {s(sT0)}, {s(sMb)}, 5")
    S(f"v_add_u32 {v(t1)}, {s(sT0)}, {v(t1)}")
    S(f"v_lshlrev_b32 {v(xo)}, 10, {v(t1)}")
    S(f"v_lshl_add_u32 {v(xo)}, {v(t0)}, 1, {v(xo)}")
    S(f"v_lshlrev_b32 {v(vOo)}, 1, {v(xo)}")
    for j in range(8):
        S(f"s_mov_b32 {s(sRow+j)}, {((j>>1)*8 + (j&1)*2)*2048}")
    S(f"v_lshlrev_b32 {v(do)}, 1, {v(t0)}")
    S(f"v_lshlrev_b32 {v(so)}, 4, {v(t1)}")
    S(f"v_lshrrev_b32 {v(t0)}, 1, {v(c_)}")
    S(f"v_lshl_add_u32 {v(t0)}, {v(g1)}, 1, {v(t0)}")
    S(f"v_lshl_add_u32 {v(t1)}, {v(vKh)}, 3, {v(r_)}")
    S(f"v_lshlrev_b32 {v(t2)}, 2, {v(t0)}")
    S(f"v_xor_b32 {v(t2)}, {v(t2)}, {v(t1)}")
    S(f"v_lshl_add_u32 {v(t2)}, {v(t0)}, 4, {v(t2)}")
    S(f"v_lshlrev_b32 {v(t2)}, 4, {v(t2)}")
    S(f"v_and_b32 {v(t3)}, 1, {v(c_)}")
    S(f"v_lshl_add_u32 {v(t2)}, {v(t3)}, 3, {v(t2)}")
    S(f"s_lshl_b32 {s(sT0)}, {s(sMb)}, 12")
    S(f"s_add_u32 {s(sT0)}, {s(sT0)}, {AOFF[0]}")
    S(f"v_add_u32 {v(bAA[0])}, {s(sT0)}, {v(t2)}")
    S(f"v_xor_b32 {v(bAA[1])}, 64, {v(bAA[0])}")
    S(f"v_lshlrev_b32 {v(t2)}, 7, {v(t1)}")
    S(f"v_lshrrev_b32 {v(t3)}, 1, {v(r_)}")
    S(f"v_xor_b32 {v(t3)}, {s(sNb)}, {v(t3)}")
    S(f"v_lshl_add_u32 {v(t2)}, {v(t3)}, 6, {v(t2)}")
    S(f"v_lshl_add_u32 {v(t2)}, {v(g1)}, 5, {v(t2)}")
    S(f"v_lshl_add_u32 {v(bBz)}, {v(c_)}, 3, {v(t2)}")
    S(f"v_and_b32 {v(t0)}, 31, {v(vLane)}")
    S(f"s_lshl_b32 {s(sT0)}, {s(sNb)}, 5")
    S(f"v_add_u32 {v(t0)}, {s(sT0)}, {v(t0)}")
    S(f"v_bfe_u32 {v(t1)}, {v(t0)}, 1, 3")
    S(f"v_xor_b32 {v(t1)}, {v(t1)}, {v(vKh)}")
    S(f"v_lshlrev_b32 {v(t0)}, 7, {v(t0)}")
    for kp in range(4):
        S(f"v_xor_b32 {v(t2)}, {2*kp}, {v(t1)}")
        S(f"v_lshl_add_u32 {v(bBy[kp])}, {v(t2)}, 4, {v(t0)}")
    srd(S, sO, sP3 + 2, 0x400000)
    tick(S, 46)
    S.raw("s_barrier")
    S.wait_vm(0)
    set_flag(S, F1_OFF, 4, 8)
    tick(S, 47)

    def epi_loads():
        L = [f"global_load_ushort {v(vD)}, {v(do)}, {s(sDk,2)}"]
        for a in range(4):
            L.append(f"s_movk_i32 {s(sT0)}, {a*8192}")
            for b in range(4):
                L.append(f"buffer_load_ushort {v(vXf+4*a+b)}, {v(xo)}, {s(sX,4)}, {s(sT0)} offen offset:{b*1024}")
        return L

    def mr_loads():
        L = [f"s_mov_b32 {s(sT0)}, {RS_OFF}"]
        for i in range(16):
            a, b = i >> 2, i & 3
            L.append(f"buffer_load_dwordx2 {v(vMR+2*i,2)}, {v(so)}, {s(sW,4)}, {s(sT0)} offen offset:{(8*a+b)*16} {SC}")
        return L
    emit(S, epi_loads())

    curwin = {"B": None}

    def set_addr(st):
        win = (BOFF[st % NB] // 49152 * 49152, st < NZ)
        if curwin["B"] == win:
            return []
        curwin["B"] = win
        if st < NZ:
            return [f"v_add_u32 {v(cB[0])}, {win[0]}, {v(bBz)}"]
        return [f"v_add_u32 {v(cB[kp])}, {win[0]}, {v(bBy[kp])}" for kp in range(4)]

    def reads2(st):
        L = []
        b = st & 1
        oa = AOFF[st % NA] - AOFF[0]
        ob = BOFF[st % NB] % 49152
        for u in range(2 if st == NZ - 1 else 4):
            L += [f"ds_read_b64_tr_b16 {v(FA[b][u],2)}, {v(bAA[0])} offset:{oa+u*1024}",
                  f"ds_read_b64_tr_b16 {v(FA[b][u]+2,2)}, {v(bAA[1])} offset:{oa+u*1024}"]
            if st < NZ:
                L += [f"ds_read_b64_tr_b16 {v(FB[b][u],2)}, {v(cB[0])} offset:{ob+u*2048}",
                      f"ds_read_b64_tr_b16 {v(FB[b][u]+2,2)}, {v(cB[0])} offset:{ob+u*2048+512}"]
            else:
                L.append(f"ds_read_b128 {v(FB[b][u],4)}, {v(cB[u])} offset:{ob}")
        return L

    def skip_work():
        L = [f"v_lshlrev_b32 {v(vD)}, 16, {v(vD)}"]
        for i in range(16):
            m = vMR + 2 * i
            x, k = vXf + i, vSk + i
            L += [f"v_lshlrev_b32 {v(x)}, 16, {v(x)}",
                  f"v_sub_f32 {v(k)}, {v(x)}, {v(m)}",
                  f"v_cvt_pk_bf16_f32 {v(k)}, {v(k)}, {v(k)}",
                  f"v_and_b32 {v(k)}, 0xffff0000, {v(k)}",
                  f"v_mul_f32 {v(k)}, {v(k)}, {v(m+1)}",
                  f"v_cvt_pk_bf16_f32 {v(k)}, {v(k)}, {v(k)}",
                  f"v_and_b32 {v(k)}, 0xffff0000, {v(k)}",
                  f"v_mul_f32 {v(k)}, {v(k)}, {v(vD)}",
                  f"v_cvt_pk_bf16_f32 {v(k)}, {v(k)}, {v(k)}",
                  f"v_and_b32 {v(k)}, 0xffff0000, {v(k)}"]
        return L

    def gate_work():
        L = []
        for i in range(0, 16, 2):
            o = vGt + 4 * ((i >> 1) & 3)
            z0, z1, e0, e1 = o, o + 1, o + 2, o + 3
            L += [f"v_cvt_pk_bf16_f32 {v(e0)}, {v(accZ+i)}, {v(accZ+i+1)}",
                  f"v_lshlrev_b32 {v(z0)}, 16, {v(e0)}",
                  f"v_and_b32 {v(z1)}, 0xffff0000, {v(e0)}",
                  f"v_mul_f32 {v(e0)}, {s(sL2E)}, {v(z0)}",
                  f"v_mul_f32 {v(e1)}, {s(sL2E)}, {v(z1)}",
                  f"v_exp_f32 {v(e0)}, -{v(e0)}",
                  f"v_exp_f32 {v(e1)}, -{v(e1)}",
                  f"v_add_f32 {v(e0)}, 1.0, {v(e0)}",
                  f"v_add_f32 {v(e1)}, 1.0, {v(e1)}",
                  f"v_rcp_f32 {v(e0)}, {v(e0)}",
                  f"v_rcp_f32 {v(e1)}, {v(e1)}",
                  f"v_mul_f32 {v(z0)}, {v(z0)}, {v(e0)}",
                  f"v_mul_f32 {v(z1)}, {v(z1)}, {v(e1)}",
                  f"v_cvt_pk_bf16_f32 {v(e0)}, {v(z0)}, {v(z1)}",
                  f"v_lshlrev_b32 {v(vGg+i)}, 16, {v(e0)}",
                  f"v_and_b32 {v(vGg+i+1)}, 0xffff0000, {v(e0)}"]
        return L

    extra = {st: [] for st in range(NST)}

    def spread(L, sts):
        n = (len(L) + len(sts) - 1) // len(sts)
        for j, st in enumerate(sts):
            extra[st] += L[j * n:(j + 1) * n]
    spread(mr_loads(), range(1, 5))
    spread(skip_work(), range(9, 21))
    spread(gate_work(), range(24, 36))
    S.raw("s_barrier")
    tick(S, 48)
    emit(S, set_addr(0) + reads2(0))
    first = {"z": True, "y": True}
    for st in range(NST):
        fill = []
        if st + 1 < NST:
            S.raw("s_barrier")
            if st % 2 == 1:
                tick(S, 16 + (st >> 1))
            fill += set_addr(st + 1) + reads2(st + 1)
        fill += extra[st]
        b = st & 1
        ac, key = (accZ, "z") if st < NZ else (accY, "y")
        main = []
        for u in range(2 if st == NZ - 1 else 4):
            c = "0" if first[key] else v(ac, 16)
            first[key] = False
            main.append(f"v_mfma_f32_32x32x16_bf16 {v(ac,16)}, {v(FA[b][u],4)}, {v(FB[b][u],4)}, {c}")
        emit(S, interleave(main, fill))
    tick(S, 49)
    for i in range(16):
        S(f"v_add_f32 {v(vSk+i)}, {v(accY+i)}, {v(vSk+i)}")
        S(f"v_fma_f32 {v(vXf+i)}, {v(vSk+i)}, {v(vGg+i)}, {v(vXf+i)}")
        a, b = i >> 2, i & 3
        S(f"buffer_store_dword {v(vXf+i)}, {v(vOo)}, {s(sO,4)}, {s(sRow + 2*a + (b>>1))} offen offset:{(b&1)*2048}")
    finish(S)
    S.label(f"{name}_end")
    S.raw("s_endpgm")
    return S, nv1
```

```python
from asmfw import Stream, Alloc, v, s

HB_OFF = 0
NKU = 150
STATS_OFF = 0xA00000
EC_OFF = 0xA10000
WS_BYTES = 0xA20000

SLOT = 49152
SCR = 3 * SLOT
ST_OFF, CS_OFF, MR_OFF, SEG_OFF = SCR, SCR + 4096, SCR + 12288, SCR + 14336

L2E = 0x3fb8aa3b
L2E_LO = 0x32a57060
LN2 = 0x3f317218
INV2PI = 0x3e22f983


def emit_exp(S, dst, src, t0, t1, sL2E, sL2Elo, sLN2):
    S(f"v_mul_f32 {v(t0)}, {s(sL2E)}, {v(src)}")
    S(f"v_fma_f32 {v(t1)}, {v(src)}, {s(sL2E)}, -{v(t0)}")
    S(f"v_fma_f32 {v(t1)}, {v(src)}, {s(sL2Elo)}, {v(t1)}")
    S(f"v_exp_f32 {v(t0)}, {v(t0)}")
    S(f"v_mul_f32 {v(t1)}, {s(sLN2)}, {v(t1)}")
    S(f"v_fma_f32 {v(dst)}, {v(t0)}, {v(t1)}, {v(t0)}")


def emit_bf16r(S, dst, src):
    S(f"v_cvt_pk_bf16_f32 {v(dst)}, {v(src)}, {v(src)}")
    S(f"v_and_b32 {v(dst)}, 0xffff0000, {v(dst)}")


def cmul(S, dr, di, ar, ai, br, bi):
    S(f"v_mul_f32 {v(dr)}, {v(ar)}, {v(br)}")
    S(f"v_mul_f32 {v(di)}, {v(ar)}, {v(bi)}")
    S(f"v_fma_f32 {v(dr)}, -{v(ai)}, {v(bi)}, {v(dr)}")
    S(f"v_fma_f32 {v(di)}, {v(ai)}, {v(br)}, {v(di)}")


def cfma(S, dr, di, ar, ai, br, bi, cr, ci):
    S(f"v_fma_f32 {v(dr)}, {v(ar)}, {v(br)}, {v(cr)}")
    S(f"v_fma_f32 {v(di)}, {v(ar)}, {v(bi)}, {v(ci)}")
    S(f"v_fma_f32 {v(dr)}, -{v(ai)}, {v(bi)}, {v(dr)}")
    S(f"v_fma_f32 {v(di)}, {v(ai)}, {v(br)}, {v(di)}")


def pk(op, d, a, b, c=None, bsel=None, negb=False):
    n = 3 if c is not None else 2
    lo = [0] * n
    hi = [1] * n
    if bsel is not None:
        lo[1] = bsel
        hi[1] = bsel
    t = f"v_pk_{op}_f32 {v(d,2)}, {v(a,2)}, {v(b,2)}"
    if c is not None:
        t += f", {v(c,2)}"
    t += " op_sel:[%s] op_sel_hi:[%s]" % (",".join(map(str, lo)), ",".join(map(str, hi)))
    if negb:
        ng = [0] * n
        ng[1] = 1
        t += " neg_lo:[%s] neg_hi:[%s]" % (",".join(map(str, ng)), ",".join(map(str, ng)))
    return t


def interleave(main, fill):
    out = []
    n = len(main)
    k = 0
    for i, m in enumerate(main):
        out.append(m)
        upto = (len(fill) * (i + 1) + n - 1) // n
        while k < upto:
            out.append(fill[k])
            k += 1
    return out


def gen_k1(name="k1_kernel", stamp=False, abl=()):
    S = Stream()
    sPTR = 16
    sWG = 32
    sWS = 36
    sX, sS_, sG, sW = 40, 44, 48, 52
    sWave, sTw, sGrp, sRb, sCb = 56, 57, 58, 59, 60
    sMX, sMS, sMG = 61, 62, 63
    sFill = 64
    sOffX, sOffG = 65, 66
    sC = 67
    sDelta = 68
    sRd = 69
    sOnes = 70
    sT0, sT1, sT2 = 71, 72, 73
    sL2E, sL2Elo, sLN2, sI2P = 74, 75, 76, 77
    sStG = 78
    sStS = 80
    sEx = 82
    sDbg = 84
    sTime = 86
    A = Alloc(1, 256)
    vLane = A()
    vX0, vX1, vS_, vG = A(), A(), A(), A()
    vAX = [A() for _ in range(4)]
    vAS = [A() for _ in range(4)]
    vAG = A()
    vSum, vSq = A(), A()
    vCS = A(4)
    vSt0, vSt1 = A(), A()
    vT = A(16)
    vLam = A(2)
    vCoef = A(2)
    vP = A(16)
    vL16 = A(2)
    acc = [A(16) for _ in range(4)]
    FX = [A(4), A(4)]
    FW = [[A(4) for _ in range(4)] for _ in range(2)]
    vM = A(16)
    vR = A(16)
    vSeg = A(16)
    vOut = A(16)
    vStamp = A()
    nvgpr = A.n

    def tick(S, idx):
        if not stamp: return
        S.raw('s_memtime s[94:95]')
        S.raw('s_waitcnt lgkmcnt(0)')
        S.lg = []
        S.raw('s_sub_u32 s94, s94, s96')
        S.raw(f'v_writelane_b32 {v(vStamp)}, s94, {idx}')

    S.label(name)
    S(f"s_cmp_ge_u32 s2, 256")
    S.raw(f"s_cbranch_scc1 {name}_end")
    if stamp:
        S(f"s_memrealtime {s(sTime,2)}")
        S(f"s_memtime s[96:97]")
    S(f"s_load_dwordx16 {s(sPTR,16)}, s[0:1], 0")
    S(f"s_load_dwordx4 {s(sWG,4)}, s[0:1], 80")
    S(f"s_load_dwordx2 {s(sWS,2)}, s[0:1], 120")
    if stamp:
        S(f"s_load_dwordx2 {s(sDbg,2)}, s[0:1], 72")
    S(f"v_and_b32 {v(vLane)}, 63, v0")
    S(f"v_lshrrev_b32 {v(vT)}, 6, v0")
    S(f"v_readfirstlane_b32 {s(sWave)}, {v(vT)}")
    S(f"s_and_b32 {s(sT0)}, s2, 7")
    S(f"s_lshr_b32 {s(sT1)}, s2, 3")
    S(f"s_and_b32 {s(sRb)}, {s(sT0)}, 1")
    S(f"s_lshl_b32 {s(sRb)}, {s(sRb)}, 3")
    S(f"s_and_b32 {s(sT2)}, {s(sT1)}, 7")
    S(f"s_add_u32 {s(sRb)}, {s(sRb)}, {s(sT2)}")
    S(f"s_lshr_b32 {s(sCb)}, {s(sT0)}, 1")
    S(f"s_lshl_b32 {s(sCb)}, {s(sCb)}, 2")
    S(f"s_lshr_b32 {s(sT2)}, {s(sT1)}, 3")
    S(f"s_add_u32 {s(sCb)}, {s(sCb)}, {s(sT2)}")
    S(f"s_and_b32 {s(sTw)}, {s(sWave)}, 3")
    S(f"s_lshr_b32 {s(sGrp)}, {s(sWave)}, 2")
    t0, t1, t2, t3 = vT, vT + 1, vT + 2, vT + 3
    S(f"v_lshrrev_b32 {v(t0)}, 3, {v(vLane)}")
    S(f"v_and_b32 {v(t1)}, 7, {v(vLane)}")
    S(f"v_lshrrev_b32 {v(t2)}, 1, {v(t0)}")
    S(f"v_xor_b32 {v(t3)}, {v(t1)}, {v(t2)}")
    S(f"s_lshl_b32 {s(sT0)}, {s(sRb)}, 7")
    S(f"s_lshl_b32 {s(sT1)}, {s(sWave)}, 4")
    S(f"s_add_u32 {s(sT0)}, {s(sT0)}, {s(sT1)}")
    S(f"v_add_u32 {v(vX0)}, {s(sT0)}, {v(t0)}")
    S(f"v_lshlrev_b32 {v(vX0)}, 10, {v(vX0)}")
    S(f"v_add_u32 {v(vX1)}, {8192 - 1024}, {v(vX0)}")
    S(f"v_lshl_add_u32 {v(vX0)}, {v(t3)}, 4, {v(vX0)}")
    S(f"v_xor_b32 {v(t2)}, 4, {v(t3)}")
    S(f"v_lshl_add_u32 {v(vX1)}, {v(t2)}, 4, {v(vX1)}")
    S(f"s_and_b32 {s(sT0)}, {s(sWave)}, 1")
    S(f"s_lshl_b32 {s(sT0)}, {s(sT0)}, 2")
    S(f"v_xor_b32 {v(t2)}, {s(sT0)}, {v(t3)}")
    S(f"s_lshl_b32 {s(sT0)}, {s(sCb)}, 5")
    S(f"s_lshl_b32 {s(sT1)}, {s(sTw)}, 3")
    S(f"s_add_u32 {s(sT0)}, {s(sT0)}, {s(sT1)}")
    S(f"v_add_u32 {v(vS_)}, {s(sT0)}, {v(t0)}")
    S(f"v_lshlrev_b32 {v(vS_)}, 10, {v(vS_)}")
    S(f"v_lshl_add_u32 {v(vS_)}, {v(t2)}, 4, {v(vS_)}")
    S(f"v_lshrrev_b32 {v(t0)}, 2, {v(vLane)}")
    S(f"s_lshl_b32 {s(sT0)}, {s(sTw)}, 4")
    S(f"v_add_u32 {v(t0)}, {s(sT0)}, {v(t0)}")
    S(f"v_mul_u32_u24 {v(vG)}, 2752, {v(t0)}")
    S(f"v_and_b32 {v(t1)}, 3, {v(vLane)}")
    S(f"v_lshl_add_u32 {v(vG)}, {v(t1)}, 4, {v(vG)}")
    S(f"s_mul_i32 {s(sT0)}, {s(sCb)}, 192")
    S(f"v_add_u32 {v(vG)}, {s(sT0)}, {v(vG)}")
    S(f"s_lshl_b32 {s(sMX)}, {s(sWave)}, 11")
    S(f"s_lshl_b32 {s(sMS)}, {s(sWave)}, 10")
    S(f"s_add_u32 {s(sMS)}, {s(sMS)}, 16384")
    S(f"s_mul_i32 {s(sMG)}, {s(sWave)}, 3072")
    S(f"s_add_u32 {s(sMG)}, {s(sMG)}, 24576")
    sOOB = 98
    S(f"s_mov_b32 {s(sOOB)}, 0x40000000")
    S(f"s_mov_b32 {s(sFill)}, 0")
    sChunk = 99
    if "rotx" in abl or "rotx2" in abl:
        S(f"s_and_b32 {s(sChunk)}, s2, 6")
        S(f"s_and_b32 {s(sT0)}, s2, 1")
        S(f"s_lshl_b32 {s(sT0)}, {s(sT0)}, 2")
        S(f"s_add_u32 {s(sChunk)}, {s(sChunk)}, {s(sT0)}")
        if "rotx2" in abl:
            S(f"s_and_b32 {s(sT0)}, {s(sRb)}, 1")
            S(f"s_lshl_b32 {s(sT0)}, {s(sT0)}, 1")
            S(f"s_add_u32 {s(sChunk)}, {s(sChunk)}, {s(sT0)}")
        S(f"s_and_b32 {s(sChunk)}, {s(sChunk)}, 7")
    else:
        S(f"s_lshl_b32 {s(sChunk)}, {s(sCb)}, 1")
        S(f"s_add_u32 {s(sChunk)}, {s(sChunk)}, {s(sRb)}")
        S(f"s_and_b32 {s(sChunk)}, {s(sChunk)}, {0 if 'norot' in abl else 7}")
    S(f"s_lshl_b32 {s(sOffX)}, {s(sChunk)}, 7")
    S(f"s_mul_i32 {s(sOffG)}, {s(sChunk)}, {64*2752}")
    lr, li, ld = vSeg, vSeg + 1, vSeg + 2
    S(f"v_and_b32 {v(t0)}, 31, {v(vLane)}")
    S(f"s_lshl_b32 {s(sT0)}, {s(sCb)}, 5")
    S(f"v_add_lshl_u32 {v(t0)}, {v(t0)}, {s(sT0)}, 1")
    S.raw("s_waitcnt lgkmcnt(0)")
    tick(S, 0)
    S(f"global_load_ushort {v(lr)}, {v(t0)}, {s(sPTR+2,2)}")
    S(f"global_load_ushort {v(li)}, {v(t0)}, {s(sPTR+4,2)}")
    S(f"global_load_ushort {v(ld)}, {v(t0)}, {s(sPTR+14,2)}")
    S(f"s_mov_b32 {s(sX)}, {s(sPTR)}")
    S(f"s_mov_b32 {s(sX+1)}, {s(sPTR+1)}")
    S(f"s_mov_b32 {s(sX+2)}, 0x200000")
    S(f"s_mov_b32 {s(sX+3)}, 0x20000")
    S(f"s_cmp_eq_u32 {s(sGrp)}, 0")
    S(f"s_cselect_b32 {s(sS_)}, {s(sPTR+6)}, {s(sPTR+8)}")
    S(f"s_cselect_b32 {s(sS_+1)}, {s(sPTR+7)}, {s(sPTR+9)}")
    S(f"s_mov_b32 {s(sS_+2)}, 0x80000")
    S(f"s_mov_b32 {s(sS_+3)}, 0x20000")
    S(f"s_cselect_b32 {s(sG)}, {s(sWG)}, {s(sWG+2)}")
    S(f"s_cselect_b32 {s(sG+1)}, {s(sWG+1)}, {s(sWG+3)}")
    S(f"s_mov_b32 {s(sG+2)}, {512*2752}")
    S(f"s_mov_b32 {s(sG+3)}, 0x20000")
    S(f"s_mov_b32 {s(sW)}, {s(sWS)}")
    S(f"s_mov_b32 {s(sW+1)}, {s(sWS+1)}")
    S(f"s_mov_b32 {s(sW+2)}, {WS_BYTES}")
    S(f"s_mov_b32 {s(sW+3)}, 0x20000")

    def dma_parts():
        P = [[f"s_add_u32 m0, {s(sFill)}, {s(sMX)}",
              f"buffer_load_dwordx4 {v(vX0)}, {s(sX,4)}, {s(sOffX)} offen lds",
              f"buffer_load_dwordx4 {v(vX1)}, {s(sX,4)}, {s(sOffX)} offen offset:1024 lds"],
             [f"s_add_u32 m0, {s(sFill)}, {s(sMS)}",
              f"buffer_load_dwordx4 {v(vS_)}, {s(sS_,4)}, {s(sOffX)} offen lds"],
             [f"s_add_u32 m0, {s(sFill)}, {s(sMG)}",
              f"buffer_load_dwordx4 {v(vG)}, {s(sG,4)}, {s(sOffG)} offen lds",
              f"s_add_u32 m0, m0, {1024-64}",
              f"buffer_load_dwordx4 {v(vG)}, {s(sG,4)}, {s(sOffG)} offen offset:64 lds",
              f"s_add_u32 m0, m0, {1024-64}",
              f"buffer_load_dwordx4 {v(vG)}, {s(sG,4)}, {s(sOffG)} offen offset:128 lds"],
             [f"s_add_u32 {s(sChunk)}, {s(sChunk)}, 1",
              f"s_and_b32 {s(sChunk)}, {s(sChunk)}, 7",
              f"s_lshl_b32 {s(sOffX)}, {s(sChunk)}, 7",
              f"s_mul_i32 {s(sOffG)}, {s(sChunk)}, {64*2752}",
              f"s_add_u32 {s(sFill)}, {s(sFill)}, {SLOT}",
              f"s_cmp_ge_u32 {s(sFill)}, {3*SLOT}",
              f"s_cselect_b32 {s(sFill)}, 0, {s(sFill)}"]]
        return P

    for c in range(2):
        for part in dma_parts():
            for ins in part:
                S(ins, tag="dma")
    for ins in dma_parts()[0]:
        S(ins, tag="dma")

    tick(S, 1)
    S(f"v_and_b32 {v(t0)}, 1, {v(vLane)}")
    S(f"v_lshlrev_b32 {v(t0)}, 3, {v(t0)}")
    S(f"v_bfe_u32 {v(t1)}, {v(vLane)}, 1, 1")
    S(f"v_add_u32 {v(t0)}, {v(t0)}, {v(t1)}")
    S(f"v_bfe_u32 {v(t1)}, {v(vLane)}, 3, 2")
    S(f"v_lshl_add_u32 {v(t0)}, {v(t1)}, 1, {v(t0)}")
    S(f"v_bfe_u32 {v(t1)}, {v(vLane)}, 2, 1")
    S(f"v_lshl_add_u32 {v(t0)}, {v(t1)}, 4, {v(t0)}")
    S(f"s_lshl_b32 {s(sT0)}, {s(sTw)}, 5")
    S(f"v_add_u32 {v(t0)}, {s(sT0)}, {v(t0)}")
    vRow = vT + 8
    S(f"v_mov_b32 {v(vRow)}, {v(t0)}")
    S(f"v_bfe_u32 {v(t1)}, {v(t0)}, 1, 3")
    S(f"v_lshrrev_b32 {v(t2)}, 5, {v(vLane)}")
    vKh = vT + 9
    S(f"v_mov_b32 {v(vKh)}, {v(t2)}")
    S(f"v_xor_b32 {v(t1)}, {v(t1)}, {v(t2)}")
    S(f"v_lshlrev_b32 {v(t0)}, 7, {v(t0)}")
    for ks in range(4):
        S(f"v_xor_b32 {v(t3)}, {2*ks}, {v(t1)}")
        S(f"v_lshl_add_u32 {v(vAX[ks])}, {v(t3)}, 4, {v(t0)}")
    S(f"v_and_b32 {v(t0)}, 31, {v(vLane)}")
    S(f"v_bfe_u32 {v(t1)}, {v(t0)}, 1, 3")
    S(f"v_xor_b32 {v(t1)}, {v(t1)}, {v(t2)}")
    S(f"v_lshlrev_b32 {v(t0)}, 7, {v(t0)}")
    S(f"v_add_u32 {v(t0)}, 16384, {v(t0)}")
    for ks in range(4):
        S(f"v_xor_b32 {v(t3)}, {2*ks}, {v(t1)}")
        S(f"v_lshl_add_u32 {v(vAS[ks])}, {v(t3)}, 4, {v(t0)}")
    S(f"v_bfe_u32 {v(t0)}, {v(vLane)}, 2, 2")
    S(f"v_lshl_add_u32 {v(t0)}, {v(t2)}, 3, {v(t0)}")
    S(f"v_lshlrev_b32 {v(t0)}, 6, {v(t0)}")
    S(f"v_bfe_u32 {v(t1)}, {v(vLane)}, 4, 1")
    S(f"v_lshl_add_u32 {v(t0)}, {v(t1)}, 5, {v(t0)}")
    S(f"v_and_b32 {v(t1)}, 3, {v(vLane)}")
    S(f"v_lshl_add_u32 {v(t0)}, {v(t1)}, 3, {v(t0)}")
    S(f"v_add_u32 {v(vAG)}, 24576, {v(t0)}")
    S(f"v_and_b32 {v(t0)}, 15, {v(vLane)}")
    S(f"v_bfe_u32 {v(t1)}, {v(vLane)}, 4, 1")
    S(f"v_lshlrev_b32 {v(t1)}, 10, {v(t1)}")
    S(f"v_lshlrev_b32 {v(t3)}, 3, {v(t2)}")
    S(f"v_xor_b32 {v(t3)}, {v(t3)}, {v(t0)}")
    S(f"v_lshl_add_u32 {v(t1)}, {v(t2)}, 9, {v(t1)}")
    S(f"v_lshl_add_u32 {v(vSt0)}, {v(t3)}, 4, {v(t1)}")
    S(f"v_xor_b32 {v(t3)}, 4, {v(t3)}")
    S(f"v_lshl_add_u32 {v(vSt1)}, {v(t3)}, 4, {v(t1)}")
    S(f"v_add_u32 {v(vSt1)}, 256, {v(vSt1)}")
    S(f"s_lshl_b32 {s(sT0)}, {s(sRb)}, 2")
    S(f"s_add_u32 {s(sT0)}, {s(sT0)}, {s(sTw)}")
    S(f"s_mul_i32 {s(sT0)}, {s(sT0)}, {NKU}")
    S(f"s_lshl_b32 {s(sT1)}, {s(sCb)}, 2")
    S(f"s_add_u32 {s(sT1)}, {s(sT1)}, 86")
    S(f"s_add_u32 {s(sStS)}, {s(sT0)}, {s(sT1)}")
    S(f"s_lshl_b32 {s(sStS)}, {s(sStS)}, 10")
    S(f"s_mul_i32 {s(sT1)}, {s(sCb)}, 6")
    for j in range(2):
        S(f"s_cmp_eq_u32 {s(sGrp)}, 0")
        S(f"s_cselect_b32 {s(sT2)}, 4, {2*j}")
        S(f"s_add_u32 {s(sT2)}, {s(sT2)}, {s(sT1)}")
        S(f"s_add_u32 {s(sStG+j)}, {s(sT0)}, {s(sT2)}")
        S(f"s_lshl_b32 {s(sStG+j)}, {s(sStG+j)}, 10")
        S(f"s_cmp_ge_u32 {s(sT2)}, 86")
        S(f"s_cselect_b32 {s(sStG+j)}, 0x40000000, {s(sStG+j)}")
    S(f"s_mov_b32 {s(sOnes)}, 0x3f803f80")
    S(f"s_mov_b32 {s(sC)}, 0")
    S(f"s_mov_b32 {s(sRd)}, 0")
    for a in acc:
        for i in range(16):
            S(f"v_mov_b32 {v(a+i)}, 0")
    S(f"v_mov_b32 {v(vSum)}, 0")
    S(f"v_mov_b32 {v(vSq)}, 0")
    for i in range(4):
        S(f"v_mov_b32 {v(vCS+i)}, 0")
    S(f"s_cmp_eq_u32 {s(sGrp)}, 0")
    S.raw(f"s_cbranch_scc0 {name}_g1")
    common_state = (list(S.vm), list(S.lg))

    def reads(grp, ks, buf):
        L = [f"ds_read_b128 {v(FX[buf],4)}, {v(vAX[ks])}"]

        def tr(dst, mat, i):
            base = ((mat * 4 + ks) * 3 + i) * 1024
            return [f"ds_read_b64_tr_b16 {v(dst,2)}, {v(vAG)} offset:{base}",
                    f"ds_read_b64_tr_b16 {v(dst+2,2)}, {v(vAG)} offset:{base+256}"]
        if grp == 0:
            L.append(f"ds_read_b128 {v(FW[buf][0],4)}, {v(vAS[ks])}")
            L.append(f"ds_read_b128 {v(FW[buf][1],4)}, {v(vAS[ks])} offset:4096")
            L += tr(FW[buf][2], 0, 2) + tr(FW[buf][3], 1, 2)
        else:
            L += tr(FW[buf][0], 0, 0) + tr(FW[buf][1], 1, 0) + tr(FW[buf][2], 0, 1) + tr(FW[buf][3], 1, 1)
        return L

    def raw_guarded(S, L, lim, lbl):
        S(f"s_cmp_lt_u32 {s(sC)}, {lim}")
        S.raw(f"s_cbranch_scc0 {lbl}")
        p0 = S.pos
        keep = list(S.vm)
        for ins in L:
            S(ins)
        S.vm = keep
        S.pos = p0
        S.label(lbl)

    def body(S, grp, lbl):
        P = dma_parts()
        for ks in range(4):
            buf = ks & 1
            fill = []
            if ks == 3:
                S.wait_lg(0)
                S(f"s_cmp_lt_u32 {s(sC)}, 6")
                S.raw(f"s_cbranch_scc1 {lbl}_w6")
                S.raw("s_waitcnt vmcnt(0)")
                S.label(f"{lbl}_w6")
                S.raw("s_waitcnt vmcnt(6)")
                if stamp:
                    S.raw(f"s_add_u32 m0, {s(sC)}, 16")
                    tick(S, "m0")
                S.raw("s_barrier")
                if stamp:
                    S.raw(f"s_add_u32 m0, {s(sC)}, 8")
                    tick(S, "m0")
                upd = [f"s_add_u32 {s(sT0)}, {s(sRd)}, {SLOT}",
                       f"s_cmp_ge_u32 {s(sT0)}, {3*SLOT}",
                       f"s_cselect_b32 {s(sT0)}, 0, {s(sT0)}",
                       f"s_sub_u32 {s(sDelta)}, {s(sT0)}, {s(sRd)}",
                       f"s_mov_b32 {s(sRd)}, {s(sT0)}"]
                regs = vAX + (vAS if grp == 0 else []) + [vAG]
                order = [vAX[0]] + ([vAS[0]] if grp == 0 else []) + [vAG] + [r for r in regs if r not in (vAX[0], vAS[0], vAG)]
                upd += [f"v_add_u32 {v(r)}, {s(sDelta)}, {v(r)}" for r in order]
                nfirst = 5 + (3 if grp == 0 else 2)
                fill += upd[:nfirst] + reads(grp, 0, buf ^ 1) + upd[nfirst:]
            else:
                fill += reads(grp, ks + 1, buf ^ 1)
            main = [f"v_mfma_f32_32x32x16_bf16 {v(acc[b],16)}, {v(FX[buf],4)}, {v(FW[buf][b],4)}, {v(acc[b],16)}" for b in range(4)]
            seq = interleave(main, fill)
            nm = 0
            for ins in seq:
                if "nomfma" in abl and ins.startswith("v_mfma"): continue
                if "noread" in abl and ins.startswith("ds_read"): continue
                S(ins)
                if ins.startswith("v_mfma"):
                    nm += 1
                    if nm == (2 if grp == 0 else 3) and "nodma" not in abl:
                        if ks == 3:
                            raw_guarded(S, P[0], 5, f"{lbl}_d{ks}")
                        elif ks == 0:
                            raw_guarded(S, P[1], 6, f"{lbl}_d{ks}")
                        elif ks == 1:
                            raw_guarded(S, P[2] + P[3], 6, f"{lbl}_d{ks}")
            if "nodot" in abl:
                continue
            if (ks & 1) == grp:
                for i in range(4):
                    S(f"v_dot2c_f32_bf16 {v(vSum)}, {s(sOnes)}, {v(FX[buf]+i)}")
                    S(f"v_dot2c_f32_bf16 {v(vSq)}, {v(FX[buf]+i)}, {v(FX[buf]+i)}")
            S(f"s_cmp_eq_u32 {s(sTw)}, {ks}")
            S.raw(f"s_cbranch_scc0 {lbl}_cs{ks}")
            p0 = S.pos
            for i in range(4):
                for b in range(4):
                    S(f"v_dot2c_f32_bf16 {v(vCS+b)}, {s(sOnes)}, {v(FW[buf][b]+i)}")
            S.pos = p0
            for b in range(4):
                S.lastw[("v", vCS + b)] = (p0 - 1, "valu", "dot:v_dot2c_f32_bf16")
            S.label(f"{lbl}_cs{ks}")

    def stats_epilogue(S, grp):
        a0, a1 = vT, vT + 1
        S(f"v_lshl_add_u32 {v(a0)}, {v(vKh)}, 7, {v(vRow)}")
        S(f"v_lshlrev_b32 {v(a0)}, 3, {v(a0)}")
        S(f"v_add_u32 {v(a0)}, {ST_OFF + grp*2048}, {v(a0)}")
        S(f"ds_write2_b32 {v(a0)}, {v(vSum)}, {v(vSq)} offset0:0 offset1:1")
        S(f"v_and_b32 {v(a1)}, 31, {v(vLane)}")
        S(f"v_lshlrev_b32 {v(a1)}, 5, {v(a1)}")
        vCsRd = vT + 2
        S(f"v_add_u32 {v(vCsRd)}, {CS_OFF + grp*4096}, {v(a1)}")
        S(f"s_lshl_b32 {s(sT0)}, {s(sTw)}, 3")
        S(f"v_lshl_add_u32 {v(a1)}, {v(vKh)}, 2, {v(vCsRd)}")
        S(f"v_add_u32 {v(a1)}, {s(sT0)}, {v(a1)}")
        for b in range(4):
            S(f"ds_write_b32 {v(a1)}, {v(vCS+b)} offset:{b*1024}")
        S.wait_lg(0)
        tick(S, 4)
        S.raw("s_barrier")
        tick(S, 5)
        S(f"v_and_b32 {v(a0)}, 31, {v(vLane)}")
        S(f"s_lshl_b32 {s(sT0)}, {s(sTw)}, 8")
        S(f"s_add_u32 {s(sT0)}, {s(sT0)}, {ST_OFF}")
        S(f"v_lshl_add_u32 {v(a1)}, {v(a0)}, 3, {s(sT0)}")
        pr = vSeg
        for j in range(4):
            S(f"ds_read_b64 {v(pr+2*j,2)}, {v(a1)} offset:{j*1024}")
        cs = [FW[0][0], FW[0][2], FW[1][0], FW[1][2]]
        assert FW[0][1] == FW[0][0] + 4 and FW[0][3] == FW[0][2] + 4 and FW[1][1] == FW[1][0] + 4 and FW[1][3] == FW[1][2] + 4
        for b in range(4):
            S(f"ds_read_b128 {v(cs[b],4)}, {v(vCsRd)} offset:{b*1024}")
            S(f"ds_read_b128 {v(cs[b]+4,4)}, {v(vCsRd)} offset:{b*1024+16}")
        S(pk("add", pr, pr, pr + 2))
        S(pk("add", pr + 4, pr + 4, pr + 6))
        S(pk("add", pr, pr, pr + 4))
        mean, ex2, var, m_b, r_ = vT + 3, vT + 4, vT + 5, vT + 6, vT + 7
        S(f"v_mul_f32 {v(mean)}, {1.0/512}, {v(pr)}")
        S(f"v_mul_f32 {v(ex2)}, {1.0/512}, {v(pr+1)}")
        S(f"v_fma_f32 {v(var)}, -{v(mean)}, {v(mean)}, {v(ex2)}")
        S(f"v_max_f32 {v(var)}, 0, {v(var)}")
        emit_bf16r(S, m_b, mean)
        emit_bf16r(S, var, var)
        S(f"v_add_f32 {v(var)}, 0x3727c5ac, {v(var)}")
        emit_bf16r(S, var, var)
        S(f"v_sqrt_f32 {v(var)}, {v(var)}")
        emit_bf16r(S, var, var)
        S(f"v_rcp_f32 {v(r_)}, {v(var)}")
        S(f"v_and_b32 {v(a1)}, 7, {v(vLane)}")
        S(f"v_bfe_u32 {v(var)}, {v(vLane)}, 3, 1")
        S(f"v_lshl_add_u32 {v(a1)}, {v(a1)}, 1, {v(var)}")
        S(f"v_bfe_u32 {v(var)}, {v(vLane)}, 4, 1")
        S(f"v_lshl_add_u32 {v(a1)}, {v(var)}, 4, {v(a1)}")
        S(f"s_lshl_b32 {s(sT0)}, {s(sWave)}, 8")
        S(f"s_add_u32 {s(sT0)}, {s(sT0)}, {MR_OFF}")
        S(f"v_lshl_add_u32 {v(a1)}, {v(a1)}, 2, {s(sT0)}")
        S(f"ds_write2_b32 {v(a1)}, {v(m_b)}, {v(r_)} offset0:0 offset1:32")
        S(f"v_lshl_add_u32 {v(a1)}, {v(vKh)}, 6, {s(sT0)}")
        for b in range(4):
            S(pk("add", cs[b], cs[b], cs[b] + 2))
            S(pk("add", cs[b] + 4, cs[b] + 4, cs[b] + 6))
            S(pk("add", cs[b], cs[b], cs[b] + 4))
            S(f"v_add_f32 {v(vCS+b)}, {v(cs[b])}, {v(cs[b]+1)}")
        S.wait_lg(0)
        for j in range(4):
            S(f"ds_read_b128 {v(vM+4*j,4)}, {v(a1)} offset:{16*j}")
        for j in range(4):
            S(f"ds_read_b128 {v(vR+4*j,4)}, {v(a1)} offset:{128+16*j}")
        if grp == 0:
            S(f"s_lshl_b32 {s(sT0)}, {s(sRb)}, 10")
            S(f"s_lshl_b32 {s(sT1)}, {s(sTw)}, 8")
            S(f"s_add_u32 {s(sT0)}, {s(sT0)}, {s(sT1)}")
            S(f"s_add_u32 {s(sT0)}, {s(sT0)}, {STATS_OFF}")
            S(f"s_cmp_eq_u32 {s(sCb)}, 0")
            S(f"s_cselect_b32 {s(sT0)}, {s(sT0)}, 0x40000000")
            S(f"v_lshlrev_b32 {v(a0)}, 3, {v(a0)}")
            assert r_ == m_b + 1 and m_b % 2 == 0
            S(f"buffer_store_dwordx2 {v(m_b,2)}, {v(a0)}, {s(sW,4)}, {s(sT0)} offen")

    def pack_store(S, src, soff, imm, out):
        for q in range(2):
            for jj in range(4):
                S(f"v_cvt_pk_bf16_f32 {v(out+4*q+jj)}, {v(src + 4*jj + q)}, {v(src + 4*jj + 2 + q)}")
        S(f"buffer_store_dwordx4 {v(out,4)}, {v(vSt0)}, {s(sW,4)}, {s(soff)} offen offset:{imm}")
        S(f"buffer_store_dwordx4 {v(out+4,4)}, {v(vSt1)}, {s(sW,4)}, {s(soff)} offen offset:{imm}")

    def glu_epilogue(S, G, U, cspair, soff, out, R2):
        for j in range(8):
            S(pk("fma", G + 2 * j, vM + 2 * j, cspair, G + 2 * j, bsel=0, negb=True))
            S(pk("fma", U + 2 * j, vM + 2 * j, cspair, U + 2 * j, bsel=1, negb=True))
        for i in range(16):
            S(f"v_max_f32 {v(G+i)}, 0, {v(G+i)}")
        for j in range(8):
            S(pk("mul", U + 2 * j, U + 2 * j, R2 + 2 * j))
        for j in range(8):
            S(pk("mul", G + 2 * j, G + 2 * j, U + 2 * j))
        pack_store(S, G, soff, 0, out)

    def loop(S, grp):
        lbl = f"{name}_L{grp}"
        tick(S, 2)
        S.wait_vm(8)
        S.vm = []
        S.raw("s_barrier")
        tick(S, 3)
        for ins in reads(grp, 0, 0):
            S(ins)
        import copy
        T = copy.deepcopy(S)
        n0 = len(T.lines)
        body(T, grp, lbl)
        b1 = T.lines[n0:]
        T("s_add_u32 s67, s67, 1")
        T("s_cmp_lt_u32 s67, 8")
        T.raw("s_nop 0")
        n1 = len(T.lines)
        body(T, grp, lbl)
        b2 = T.lines[n1:]
        assert abl or b1 == b2, "loop body not at fixpoint:\n" + "\n".join(a + "  |  " + b for a, b in zip(b1, b2) if a != b)
        S.label(lbl)
        body(S, grp, lbl)
        S(f"s_add_u32 {s(sC)}, {s(sC)}, 1")
        S(f"s_cmp_lt_u32 {s(sC)}, 8")
        S.raw(f"s_cbranch_scc1 {lbl}")
        S.wait_lg(0)

    def finish(S):
        if stamp:
            S.wait_vm(0)
            S(f"s_memrealtime {s(sTime+2,2)}")
            S.raw("s_waitcnt lgkmcnt(0)")
            S(f"s_lshl_b32 {s(sT0)}, s2, 3")
            S(f"s_add_u32 {s(sT0)}, {s(sT0)}, {s(sWave)}")
            S(f"s_lshl_b32 {s(sT0)}, {s(sT0)}, 4")
            S(f"v_mov_b32 {v(vT)}, {s(sTime)}")
            S(f"v_mov_b32 {v(vT+1)}, {s(sTime+2)}")
            S(f"v_mov_b32 {v(vT+2)}, {s(sTime+4)}")
            S(f"s_sub_u32 {s(sTime+6)}, {s(sTime+6)}, s96")
            S(f"v_mov_b32 {v(vT+3)}, {s(sTime+6)}")
            S(f"v_mov_b32 {v(vT+4)}, {s(sT0)}")
            S(f"global_store_dwordx4 {v(vT+4)}, {v(vT,4)}, {s(sDbg,2)}")
            tick(S, 7)
            S(f"s_lshl_b32 {s(sT0)}, {s(sT0)}, 4")
            S(f"s_add_u32 {s(sT0)}, {s(sT0)}, 0x100000")
            S(f"v_lshl_add_u32 {v(vT+4)}, {v(vLane)}, 2, {s(sT0)}")
            S(f"global_store_dword {v(vT+4)}, {v(vStamp)}, {s(sDbg,2)}")
        S.raw("s_endpgm")

    S(f"s_mov_b32 {s(sL2E)}, {L2E}")
    S(f"s_mov_b32 {s(sL2Elo)}, {L2E_LO}")
    S(f"s_mov_b32 {s(sLN2)}, {LN2}")
    S(f"s_mov_b32 {s(sI2P)}, {INV2PI}")
    emit_lambda(S, lr, li, ld, vLam, vCoef, vSeg + 4, (sL2E, sL2Elo, sLN2, sI2P))
    S(f"v_mov_b32 {v(vP)}, {v(vLam)}")
    S(f"v_mov_b32 {v(vP+1)}, {v(vLam+1)}")
    for j in range(1, 8):
        cmul(S, vP + 2 * j, vP + 2 * j + 1, vP + 2 * j - 2, vP + 2 * j - 1, vLam, vLam + 1)
    cmul(S, vL16, vL16 + 1, vP + 14, vP + 15, vP + 14, vP + 15)
    loop(S, 0)
    if stamp:
        S(f"s_memrealtime {s(sTime+4,2)}")
        S(f"s_memtime {s(sTime+6,2)}")
    stats_epilogue(S, 0)
    are, aim = acc[0], acc[1]
    tA, tB = vOut, vOut + 2
    for j in range(8):
        S(pk("fma", are + 2 * j, vM + 2 * j, vCS, are + 2 * j, bsel=0, negb=True))
        S(pk("fma", aim + 2 * j, vM + 2 * j, vCS, aim + 2 * j, bsel=1, negb=True))
    for j in range(8):
        S(pk("mul", are + 2 * j, are + 2 * j, vR + 2 * j))
        S(pk("mul", aim + 2 * j, aim + 2 * j, vR + 2 * j))
    for j in range(8):
        ta = vOut + 4 * (j & 1)
        tb = ta + 2
        S(pk("mul", ta, are + 2 * j, vCoef, bsel=0))
        S(pk("mul", tb, are + 2 * j, vCoef, bsel=1))
        S(pk("fma", are + 2 * j, aim + 2 * j, vCoef, ta, bsel=1))
        S(pk("fma", aim + 2 * j, aim + 2 * j, vCoef, tb, bsel=0, negb=True))
    for j in range(1, 8):
        S(pk("fma", are + 2 * j, are + 2 * j - 2, vLam, are + 2 * j, bsel=0))
        S(pk("fma", aim + 2 * j, aim + 2 * j - 2, vLam, aim + 2 * j, bsel=0))
        S(pk("fma", are + 2 * j, aim + 2 * j - 2, vLam, are + 2 * j, bsel=1, negb=True))
        S(pk("fma", aim + 2 * j, are + 2 * j - 2, vLam, aim + 2 * j, bsel=1))
    e0 = vT + 10
    assert e0 % 2 == 0
    cfma(S, e0, e0 + 1, vP + 14, vP + 15, are + 14, aim + 14, are + 15, aim + 15)
    a0, a1 = vT, vT + 1
    S(f"v_and_b32 {v(a0)}, 31, {v(vLane)}")
    S(f"v_lshlrev_b32 {v(a0)}, 6, {v(a0)}")
    S(f"v_add_u32 {v(a0)}, {SEG_OFF}, {v(a0)}")
    S(f"s_lshl_b32 {s(sT0)}, {s(sTw)}, 1")
    vSidx = vT + 2
    S(f"v_add_u32 {v(vSidx)}, {s(sT0)}, {v(vKh)}")
    S(f"v_lshl_add_u32 {v(a1)}, {v(vSidx)}, 3, {v(a0)}")
    S(f"ds_write_b64 {v(a1)}, {v(e0,2)}")
    S.wait_lg(0)
    tick(S, 6)
    S.raw("s_barrier")
    for j in range(4):
        S(f"ds_read_b128 {v(vSeg+4*j,4)}, {v(a0)} offset:{16*j}")
    for j in range(8):
        S(pk("mul", vR + 2 * j, vR + 2 * j, vR + 2 * j))
    glu_epilogue(S, acc[2], acc[3], vCS + 2, sStG + 1, vOut, vR)
    pf = [vT + 4, vT + 6]
    cin = vT + 12
    S(f"v_mov_b32 {v(cin)}, 0")
    S(f"v_mov_b32 {v(cin+1)}, 0")
    cur = vSeg
    for j in range(1, 8):
        S(f"v_cmp_eq_u32 vcc, {j}, {v(vSidx)}")
        nxt = pf[j & 1]
        cfma(S, nxt, nxt + 1, vL16, vL16 + 1, cur, cur + 1, vSeg + 2 * j, vSeg + 2 * j + 1)
        S(f"v_cndmask_b32 {v(cin)}, {v(cin)}, {v(cur)}, vcc")
        S(f"v_cndmask_b32 {v(cin+1)}, {v(cin+1)}, {v(cur+1)}, vcc")
        cur = nxt
    S(f"s_lshl_b32 {s(sT0)}, {s(sRb)}, 12")
    S(f"s_lshl_b32 {s(sT1)}, {s(sCb)}, 8")
    S(f"s_add_u32 {s(sT0)}, {s(sT0)}, {s(sT1)}")
    S(f"s_add_u32 {s(sT0)}, {s(sT0)}, {EC_OFF}")
    S(f"s_cmp_eq_u32 {s(sTw)}, 0")
    S(f"s_cselect_b32 {s(sT0)}, {s(sT0)}, 0x40000000")
    S(f"v_and_b32 {v(a0)}, 31, {v(vLane)}")
    S(f"v_lshlrev_b32 {v(a0)}, 3, {v(a0)}")
    S(f"buffer_store_dwordx2 {v(cur,2)}, {v(a0)}, {s(sW,4)}, {s(sT0)} offen")
    CR, CI = vSeg, vSeg + 2
    S(f"v_mov_b32 {v(CR)}, {v(cin)}")
    S(f"v_mov_b32 {v(CI)}, {v(cin+1)}")
    cfma(S, CR + 1, CI + 1, vP + 14, vP + 15, cin, cin + 1, are + 14, aim + 14)
    for j in range(8):
        S(pk("fma", are + 2 * j, CR, vP + 2 * j, are + 2 * j, bsel=0))
        S(pk("fma", aim + 2 * j, CI, vP + 2 * j, aim + 2 * j, bsel=0))
        S(pk("fma", are + 2 * j, CI, vP + 2 * j, are + 2 * j, bsel=1, negb=True))
        S(pk("fma", aim + 2 * j, CR, vP + 2 * j, aim + 2 * j, bsel=1))
    pack_store(S, are, sStS, 0, vOut + 8)
    pack_store(S, aim, sStS, 2048, vM)
    finish(S)

    S.label(f"{name}_g1")
    S.vm, S.lg = list(common_state[0]), list(common_state[1])
    S.pos += 100
    loop(S, 1)
    if stamp:
        S(f"s_memrealtime {s(sTime+4,2)}")
        S(f"s_memtime {s(sTime+6,2)}")
    stats_epilogue(S, 1)
    for j in range(8):
        S(pk("mul", vR + 2 * j, vR + 2 * j, vR + 2 * j))
    glu_epilogue(S, acc[0], acc[1], vCS, sStG, vOut, vR)
    S.raw("s_barrier")
    glu_epilogue(S, acc[2], acc[3], vCS + 2, sStG + 1, vOut + 8, vR)
    finish(S)
    S.label(f"{name}_end")
    S.raw("s_endpgm")
    return S, nvgpr


def emit_lambda(S, lr, li, ld, vLam, vCoef, tmp, consts, want_ab=None):
    sL2E, sL2Elo, sLN2, sI2P = consts
    t = [tmp + i for i in range(8)]
    S(f"v_lshlrev_b32 {v(lr)}, 16, {v(lr)}")
    S(f"v_lshlrev_b32 {v(li)}, 16, {v(li)}")
    S(f"v_lshlrev_b32 {v(ld)}, 16, {v(ld)}")
    emit_exp(S, ld, ld, t[0], t[1], sL2E, sL2Elo, sLN2)
    emit_bf16r(S, ld, ld)
    S(f"v_mul_f32 {v(t[2])}, {v(ld)}, {v(lr)}")
    S(f"v_mul_f32 {v(t[3])}, {v(ld)}, {v(li)}")
    S(f"v_mul_f32 {v(t[3])}, {s(sI2P)}, {v(t[3])}")
    if want_ab is not None:
        S(f"v_mov_b32 {v(want_ab)}, {v(t[2])}")
        S(f"v_mov_b32 {v(want_ab+1)}, {v(t[3])}")
    emit_exp(S, t[2], t[2], t[0], t[1], sL2E, sL2Elo, sLN2)
    S(f"v_rndne_f32 {v(t[4])}, {v(t[3])}")
    S(f"v_sub_f32 {v(t[3])}, {v(t[3])}, {v(t[4])}")
    S(f"v_cos_f32 {v(t[4])}, {v(t[3])}")
    S(f"v_sin_f32 {v(t[5])}, {v(t[3])}")
    S(f"v_mul_f32 {v(vLam)}, {v(t[2])}, {v(t[4])}")
    S(f"v_mul_f32 {v(t[5])}, {v(t[2])}, {v(t[5])}")
    if vCoef is not None:
        S(f"v_add_f32 {v(t[4])}, -1.0, {v(vLam)}")
        S(f"v_mul_f32 {v(t[0])}, {v(lr)}, {v(lr)}")
        S(f"v_fma_f32 {v(t[0])}, {v(li)}, {v(li)}, {v(t[0])}")
        S(f"v_rcp_f32 {v(t[0])}, {v(t[0])}")
        S(f"v_mul_f32 {v(t[1])}, {v(t[4])}, {v(lr)}")
        S(f"v_fma_f32 {v(t[1])}, {v(t[5])}, {v(li)}, {v(t[1])}")
        S(f"v_mul_f32 {v(t[6])}, {v(t[4])}, {v(li)}")
        S(f"v_fma_f32 {v(t[6])}, -{v(t[5])}, {v(lr)}, {v(t[6])}")
        S(f"v_add_f32 {v(t[0])}, {v(t[0])}, {v(t[0])}")
        S(f"v_mul_f32 {v(vCoef)}, {v(t[1])}, {v(t[0])}")
        S(f"v_mul_f32 {v(vCoef+1)}, {v(t[6])}, {v(t[0])}")
    S(f"v_sub_f32 {v(vLam+1)}, 0, {v(t[5])}")


def kernel_desc(name, nvgpr, nsgpr=102):
    nv = (nvgpr + 7) // 8 * 8
    return f""".p2align 6
.amdhsa_kernel {name}
  .amdhsa_next_free_vgpr {nv}
  .amdhsa_next_free_sgpr {nsgpr}
  .amdhsa_accum_offset {nv}
  .amdhsa_group_segment_fixed_size 0
  .amdhsa_kernarg_size 128
  .amdhsa_user_sgpr_count 2
  .amdhsa_user_sgpr_kernarg_segment_ptr 1
  .amdhsa_system_sgpr_workgroup_id_x 1
  .amdhsa_float_denorm_mode_32 3
.end_amdhsa_kernel
"""
```

```python
import sys
from k1 import kernel_desc
import importlib
gen = importlib.import_module([a[4:] for a in sys.argv if a.startswith('mod=')][0] if any(a.startswith('mod=') for a in sys.argv) else 'fused3').gen
stamp = "stamp" in sys.argv
opt = tuple(a[4:] for a in sys.argv if a.startswith("opt="))
outp = [a for a in sys.argv[1:] if a.endswith(".s")]
outp = outp[0] if outp else "f_test.s"
NAME = "recurrent_scan__ssm_conv_s5__glu_gated_reglu__prompt_kernel"
ref = open("recurrent_scan__ssm_conv_s5__glu_gated_reglu__prompt.s.ref").read()
hdr = [l for l in ref.split("\n") if l.startswith(";") and "@launch" not in l]
S, n = gen(NAME, stamp=stamp, opt=opt)
txt = "\n".join(hdr) + f"""
; @launch grid=(256,1,1) block=(512,1,1) lds=163840
.amdgcn_target "amdgcn-amd-amdhsa--gfx950"
.text
.globl {NAME}
.p2align 8
.type {NAME},@function
""" + S.text().replace(NAME + "_", "L_") + '.section .rodata,"a"\n' + kernel_desc(NAME, n)
open(outp, "w").write(txt)
print("vgprs", n, "instrs", S.nins, "bytes", len(txt))
```
